```python
import torch

def _softmax(x, axis=-1):
    return torch.softmax(x, dim=axis)
def _gelu(x):
    return torch.nn.functional.gelu(x, approximate="tanh")
def _silu(x):
    return torch.nn.functional.silu(x)
def _sigmoid(x):
    return torch.sigmoid(x)
def _layernorm(x, axis=-1, eps=1e-5):
    m = x.mean(dim=axis, keepdim=True)
    v = x.var(dim=axis, keepdim=True, unbiased=False)
    return (x - m) / torch.sqrt(v + eps)
def _scatter_add(tgt, idx, src, axis=0):
    return tgt.clone().index_add_(axis, idx, src)
def _segment_sum(src, seg, n):
    out = torch.zeros((n,) + src.shape[1:], dtype=src.dtype)
    return out.index_add_(0, seg, src)
def _pad(x, pw):
    flat = tuple(v for pair in reversed(pw) for v in pair)
    return torch.nn.functional.pad(x, flat)

kernel_name = 'parallel_sum__ssm_conv_s4__geglu_ffn__prompt'

def setup_inputs():

    _w = (lambda a: (lambda t: t.to(torch.bfloat16) if t.is_floating_point() else t)(torch.as_tensor(a)))
    def _A_setup():
        B, L, D, N = 1, 2048, 512, 128
        A_re = -(lambda _x: torch.exp(torch.as_tensor(_x)))((lambda *s: torch.randn(*s, dtype=torch.bfloat16) * 3.2)(D, N))
        A_im = torch.pi * (lambda *s: torch.randn(*s, dtype=torch.bfloat16) * 0.2)(D, N)
        B_re = (lambda *s: torch.randn(*s, dtype=torch.bfloat16) * 0.4)(D, N)
        B_im = (lambda *s: torch.randn(*s, dtype=torch.bfloat16) * 0.4)(D, N)
        C_re = (lambda *s: torch.randn(*s, dtype=torch.bfloat16) * 0.4)(D, N)
        C_im = (lambda *s: torch.randn(*s, dtype=torch.bfloat16) * 0.4)(D, N)
        log_dt = (lambda *s: torch.randn(*s, dtype=torch.bfloat16) * 0.2)(D) * 0.5 - 4.0
        Dskip = (lambda *s: torch.randn(*s, dtype=torch.bfloat16) * 0.4)(D)
        return {
            "u": _w((lambda *s: torch.randn(*s, dtype=torch.bfloat16) * 0.05)(B, L, D)),
            "A_re": _w(A_re),
            "A_im": _w(A_im),
            "B_re": _w(B_re),
            "B_im": _w(B_im),
            "C_re": _w(C_re),
            "C_im": _w(C_im),
            "log_dt": _w(log_dt),
            "Dskip": _w(Dskip),
        }
    _A_in = _A_setup()

    def _B_setup():
        B, S, D, F = 1, 2048, 512, 1792
        return {
            "x": _w((lambda *s: torch.randn(*s, dtype=torch.bfloat16) * 0.05)(B, S, D)),
            "w_gate": _w((lambda *s: torch.randn(*s, dtype=torch.bfloat16) * 0.05)(D, F)),
            "w_up": _w((lambda *s: torch.randn(*s, dtype=torch.bfloat16) * 0.05)(D, F)),
            "w_down": _w((lambda *s: torch.randn(*s, dtype=torch.bfloat16) * 0.05)(F, D)),
        }
    _B_in = _B_setup()

    return {
        "A_u": _A_in["u"],
        "A_A_re": _A_in["A_re"],
        "A_A_im": _A_in["A_im"],
        "A_B_re": _A_in["B_re"],
        "A_B_im": _A_in["B_im"],
        "A_C_re": _A_in["C_re"],
        "A_C_im": _A_in["C_im"],
        "A_log_dt": _A_in["log_dt"],
        "A_Dskip": _A_in["Dskip"],
        "B_x": _B_in["x"],
        "B_w_gate": _B_in["w_gate"],
        "B_w_up": _B_in["w_up"],
        "B_w_down": _B_in["w_down"],
    }

def reference(A_u, A_A_re, A_A_im, A_B_re, A_B_im, A_C_re, A_C_im, A_log_dt, A_Dskip, B_x, B_w_gate, B_w_up, B_w_down):
    def _A_ref(u, A_re, A_im, B_re, B_im, C_re, C_im, log_dt, Dskip):
        Bsz, L, D = u.shape
        dt = torch.exp(log_dt)[:, None]
        A = A_re + 1j * A_im
        Bc = B_re + 1j * B_im
        Cc = C_re + 1j * C_im
        logdA = dt * A
        dB = dt * Bc
        l = (lambda x, dt: x.to(dt))(torch.arange(L), A_re.dtype)
        P = torch.exp(logdA[:, :, None] * l[None, None, :])
        K = torch.einsum("dn,dnl,dn->dl", Cc, P, dB).real
        L2 = 2 * L
        Kp = _pad(K, ((0, 0), (0, L)))
        up = (lambda x, *d: x.permute(*d))(u, 0, 2, 1)
        up = _pad(up, ((0, 0), (0, 0), (0, L)))
        Kf = (lambda x, axes=(-2,-1): torch.fft.rfft2(x.float(), dim=axes))(Kp[:, None, :], axes=(-2, -1))
        Uf = (lambda x, axes=(-2,-1): torch.fft.rfft2(x.float(), dim=axes))(up[:, :, None, :], axes=(-2, -1))
        Yf = Uf * Kf[None, :, :, :]
        y = (lambda x, s, axes=(-2,-1): torch.fft.irfft2(x, s=s, dim=axes).to(torch.bfloat16))(Yf, (1, L2), axes=(-2, -1))[:, :, 0, :L]
        y = (lambda x, *d: x.permute(*d))(y, 0, 2, 1) + u * Dskip[None, None, :]
        return y

    def _B_ref(x, w_gate, w_up, w_down):
        return (_gelu(x @ w_gate) * (x @ w_up)) @ w_down

    x = A_u
    xn = _layernorm(x, axis=-1)
    return x + _A_ref(xn, A_A_re, A_A_im, A_B_re, A_B_im, A_C_re, A_C_im, A_log_dt, A_Dskip) + _B_ref(xn, B_w_gate, B_w_up, B_w_down)
```

```python
import re

TRANS = ("v_exp_f32", "v_log_f32", "v_rcp_f32", "v_rsq_f32", "v_sqrt_f32", "v_sin_f32", "v_cos_f32",
         "v_rcp_iflag_f32", "v_exp_f16", "v_rcp_f16")

def regs_of(tok):
    tok = tok.strip()
    tok = tok.lstrip('-')
    if tok.startswith('abs(') and tok.endswith(')'):
        tok = tok[4:-1]
    if tok.startswith('|') and tok.endswith('|'):
        tok = tok[1:-1]
    m = re.fullmatch(r'([vsa])\[(\d+):(\d+)\]', tok)
    if m:
        return {(m.group(1), i) for i in range(int(m.group(2)), int(m.group(3)) + 1)}
    m = re.fullmatch(r'([vsa])(\d+)', tok)
    if m:
        return {(m.group(1), int(m.group(2)))}
    if tok in ('vcc', 'vcc_lo', 'vcc_hi'):
        return {('s', 'vcc')}
    if tok in ('exec', 'exec_lo', 'exec_hi'):
        return {('s', 'exec')}
    if tok == 'm0':
        return {('s', 'm0')}
    return set()

class Ins:
    __slots__ = ('text', 'op', 'ops', 'mods', 'defs', 'uses', 'cls', 'tag', 'mf_c', 'mf_ab', 'passes', 'sdata', 'dpp')
    def __init__(self, text, tag=None):
        self.text = text
        self.tag = tag
        t = text.split(';')[0].strip()
        parts = t.split(None, 1)
        self.op = parts[0]
        rest = parts[1] if len(parts) > 1 else ''
        ops = []; depth = 0; cur = ''
        for ch in rest:
            if ch in '[(': depth += 1
            if ch in '])': depth -= 1
            if ch == ',' and depth == 0:
                ops.append(cur.strip()); cur = ''
            else:
                cur += ch
        mods = ''
        if cur.strip():
            last = cur.strip().split(None, 1)
            ops.append(last[0])
            mods = last[1] if len(last) > 1 else ''
        self.ops = ops; self.mods = mods
        self.classify()

    def classify(self):
        op = self.op; ops = self.ops
        R = [regs_of(o) for o in ops]
        U = lambda lst: set().union(*lst) if lst else set()
        self.defs = set(); self.uses = set(); self.mf_c = set(); self.mf_ab = set(); self.passes = 0
        self.sdata = set(); self.dpp = False
        base = re.sub(r'_(e32|e64|dpp|sdwa)$', '', op)
        if op.startswith('v_mfma'):
            self.cls = 'mfma'
            self.defs = R[0]; self.mf_ab = R[1] | R[2]; self.mf_c = R[3]; self.uses = self.mf_ab | self.mf_c
            self.passes = 8 if '32x32x16' in op else 4 if '16x16x32' in op else None
            assert self.passes, op
        elif op.startswith('v_'):
            self.cls = 'trans' if base in TRANS else 'valu'
            self.dpp = bool(re.search(r'quad_perm|row_|wave_|bank_mask', self.mods))
            if base.startswith('v_cmpx'):
                self.defs = R[0] | {('s', 'exec')}; self.uses = U(R[1:])
            elif base.startswith('v_cmp'):
                self.defs = R[0]; self.uses = U(R[1:])
            elif base in ('v_add_co_u32', 'v_sub_co_u32', 'v_subrev_co_u32', 'v_addc_co_u32', 'v_subb_co_u32',
                          'v_mad_u64_u32', 'v_div_scale_f32'):
                self.defs = R[0] | R[1]; self.uses = U(R[2:])
            elif base in ('v_permlane32_swap_b32', 'v_permlane16_swap_b32', 'v_swap_b32'):
                self.defs = R[0] | R[1]; self.uses = R[0] | R[1]
            elif base == 'v_nop':
                pass
            else:
                self.defs = R[0]; self.uses = U(R[1:])
                if base in ('v_fmac_f32', 'v_dot2c_f32_bf16', 'v_pk_fmac_f16', 'v_writelane_b32', 'v_dot2c_f32_f16') or self.dpp \
                        or 'dst_unused:UNUSED_PRESERVE' in self.mods or ('op_sel' in self.mods and not base.startswith('v_pk_')):
                    self.uses |= R[0]
        elif op.startswith('ds_'):
            self.cls = 'ds'
            if op.startswith(('ds_read', 'ds_bpermute', 'ds_permute', 'ds_swizzle')) or '_rtn' in op:
                self.defs = R[0]; self.uses = U(R[1:])
                if 'd16' in op: self.uses |= R[0]
            else:
                self.uses = U(R)
        elif op.startswith('buffer_') or op.startswith('global_'):
            self.cls = 'vmem'
            lds = bool(re.search(r'\blds\b', self.mods)) or op.startswith('global_load_lds')
            if op in ('buffer_inv', 'buffer_wbl2'):
                pass
            elif lds:
                self.uses = U(R) | {('s', 'm0')}
                self.cls = 'dma'
            elif '_load' in op:
                self.defs = R[0]; self.uses = U(R[1:])
                if 'd16' in op: self.uses |= R[0]
            elif '_store' in op:
                self.uses = U(R)
                d = R[0] if op.startswith('buffer_') else R[1]
                if 'x4' in op or 'x3' in op: self.sdata = d
            elif 'atomic' in op:
                self.uses = U(R)
                if re.search(r'\bsc0\b', self.mods): self.defs = R[0]
            else:
                raise ValueError(op)
        elif op.startswith('s_load') or op.startswith('s_memtime') or op.startswith('s_memrealtime') or op.startswith('s_buffer_load'):
            self.cls = 'smem'
            self.defs = R[0]; self.uses = U(R[1:])
        elif op.startswith('s_'):
            self.cls = 'salu'
            if op.startswith(('s_cmp', 's_cbranch', 's_branch', 's_barrier', 's_waitcnt', 's_nop', 's_endpgm', 's_setprio', 's_sleep', 's_bitcmp', 's_setreg')):
                self.uses = U(R)
            elif 'saveexec' in op:
                self.defs = R[0] | {('s', 'exec')}; self.uses = U(R[1:]) | {('s', 'exec')}
            else:
                self.defs = R[0]; self.uses = U(R[1:])
                if op in ('s_addk_i32', 's_mulk_i32'): self.uses |= R[0]
        else:
            raise ValueError("unknown op " + self.text)

class State:
    def __init__(self):
        self.vm = {}
        self.lg = {}
        self.hist = []
    def copy(self):
        s = State()
        s.vm = {k: list(v) for k, v in self.vm.items()}
        s.lg = {k: list(v) for k, v in self.lg.items()}
        s.hist = [list(h) for h in self.hist]
        return s
    def merge(self, o):
        for a, b in ((self.vm, o.vm), (self.lg, o.lg)):
            for k, v in b.items():
                if k in a: a[k][1] = min(a[k][1], v[1])
                else: a[k] = list(v)
        self.hist = self.hist + [list(h) for h in o.hist]

class Asm:
    def __init__(self):
        self.out = []
        self.st = State()
        self.nid = 0
        self.saved = {}
        self.nops = 0
        self.cnt = {}

    def raw(self, s):
        self.out.append(s)
    def comment(self, s):
        self.out.append('    ; ' + s)
    def label(self, name):
        self.out.append(name + ':')

    def _adv(self, n):
        for h in self.st.hist: h[1] += n
        self.st.hist = [h for h in self.st.hist if h[1] < 24]

    def _wait(self, vm=None, lg=None):
        parts = []
        if vm is not None:
            vm = min(vm, 63); parts.append('vmcnt(%d)' % vm)
            self.st.vm = {k: v for k, v in self.st.vm.items() if v[1] < vm}
        if lg is not None:
            lg = min(lg, 15); parts.append('lgkmcnt(%d)' % lg)
            self.st.lg = {k: v for k, v in self.st.lg.items() if v[1] < lg}
        if parts:
            self.out.append('    s_waitcnt ' + ' '.join(parts))
            self._adv(1)

    def wait_tag(self, *tags, lg0=False):
        n = None
        for v in self.st.vm.values():
            if v[2] in tags: n = v[1] if n is None else min(n, v[1])
        l = 0 if (lg0 and self.st.lg) else None
        self._wait(vm=n, lg=l)
    def wait_vm0(self):
        self._wait(vm=0)
    def wait_lg0(self, force=False):
        if self.st.lg or force: self._wait(lg=0)
    def wait_all(self):
        self._wait(vm=0, lg=0)

    def _need(self, ins):
        need = 0
        isvalu = ins.cls in ('valu', 'trans')
        for p, d in self.st.hist:
            req = 0
            pv = p.cls in ('valu', 'trans')
            vdef = {r for r in p.defs if r[0] in 'va'}
            sdef = {r for r in p.defs if r[0] == 's'}
            if pv:
                if ins.cls == 'mfma' and (vdef & ins.uses): req = max(req, 2)
                if ins.cls == 'mfma' and ('s', 'exec') in sdef: req = max(req, 4)
                if p.cls == 'trans' and isvalu and (vdef & ins.uses): req = max(req, 1)
                if ins.cls in ('vmem', 'dma') and (sdef & ins.uses): req = max(req, 5)
                if isvalu and (sdef & ins.uses): req = max(req, 4 if ins.op.startswith(('v_readlane', 'v_writelane')) else 2)
                if ins.cls in ('salu', 'smem') and (sdef & ins.uses): req = max(req, 1)
                if ins.op.startswith(('v_readlane', 'v_readfirstlane')) and (vdef & ins.uses): req = max(req, 1)
                if ins.op.startswith(('v_readlane', 'v_readfirstlane', 'v_writelane', 'v_permlane')) and ('s', 'exec') in sdef: req = max(req, 4)
                if isvalu and ins.dpp and (vdef & ins.uses): req = max(req, 2)
                if isvalu and ins.dpp and ('s', 'exec') in sdef: req = max(req, 5)
                if ins.op.startswith('v_permlane') and (vdef & ins.uses): req = max(req, 2)
                if isvalu and ('sdwa' in p.op or 'dst_sel' in p.mods or ('op_sel' in p.mods and not p.op.startswith('v_pk_'))) and (vdef & (ins.uses | ins.defs)): req = max(req, 1)
                if p.op.startswith('v_dot') and (vdef & (ins.uses | ins.defs)) and not (ins.op == p.op and ins.defs == p.defs and not (vdef & (regs_of(ins.ops[1]) | regs_of(ins.ops[2])))): req = max(req, 3)
            if p.cls == 'mfma':
                big = {8: 12, 4: 8}[p.passes]
                if ins.cls == 'mfma':
                    if p.defs & ins.mf_ab: req = max(req, big)
                    if p.defs & ins.mf_c and not (p.defs == ins.mf_c and p.passes == ins.passes): req = max(req, big - 2)
                    if (p.defs & ins.defs) and not (p.defs == ins.defs and p.passes == ins.passes and ins.mf_c == ins.defs): req = max(req, big)
                elif ins.cls in ('valu', 'trans', 'ds', 'vmem', 'dma'):
                    if p.defs & (ins.uses | ins.defs): req = max(req, big)
                    if (p.mf_c & ins.defs): req = max(req, p.passes - 1)
            if p.sdata and (p.sdata & ins.defs): req = max(req, 2)
            if p.cls == 'salu' and ('s', 'm0') in p.defs and ins.cls == 'dma': req = max(req, 1)
            if req - d > need: need = req - d
        return need

    def __call__(self, text, tag=None):
        for line in text.strip().split('\n'):
            line = line.strip()
            if not line or line.startswith(';'): continue
            self.emit(line, tag)

    def emit(self, text, tag=None):
        ins = Ins(text, tag)
        touch = ins.uses | ins.defs
        vmn = None
        for v in self.st.vm.values():
            if v[0] & touch: vmn = v[1] if vmn is None else min(vmn, v[1])
        lgn = None
        smem_out = any(v[3] for v in self.st.lg.values())
        for v in self.st.lg.values():
            if v[0] & touch:
                n = 0 if smem_out else v[1]
                lgn = n if lgn is None else min(lgn, n)
        self._wait(vm=vmn, lg=lgn)
        need = self._need(ins)
        while need > 0:
            k = min(need, 16)
            self.out.append('    s_nop %d' % (k - 1)); self._adv(k); need -= k; self.nops += 1
        self.out.append('    ' + text)
        self.cnt[ins.cls] = self.cnt.get(ins.cls, 0) + 1
        if ins.op == 's_nop':
            self._adv(int(ins.ops[0], 0) + 1)
        else:
            self._adv(1)
        if ins.op == 's_waitcnt':
            raise ValueError("use wait helpers")
        self.st.hist.append([ins, 0])
        self.nid += 1
        if ins.cls in ('vmem', 'dma'):
            for v in self.st.vm.values(): v[1] += 1
            self.st.vm[self.nid] = [set(ins.defs), 0, tag]
        elif ins.cls in ('ds', 'smem'):
            for v in self.st.lg.values(): v[1] += 1
            self.st.lg[self.nid] = [set(ins.defs), 0, tag, ins.cls == 'smem']

    def save(self, name): self.saved[name] = self.st.copy()
    def restore(self, name): self.st = self.saved[name].copy()
    def merge(self, name): self.st.merge(self.saved[name])
    def reset(self): self.st = State()

    def barrier(self, lg0=True):
        if lg0: self.wait_lg0()
        self('s_barrier')

    def text(self):
        return '\n'.join(self.out) + '\n'

def interleave(main, fill, start=0, per=None):
    idx = [i for i, m in enumerate(main) if (m[0] if isinstance(m, tuple) else m if isinstance(m, str) else '').lstrip().startswith('v_mfma')]
    idx = idx[start:]
    out = []; n = len(idx); pos = {}
    for j, i in enumerate(idx):
        lo = len(fill) * j // n; hi = len(fill) * (j + 1) // n
        pos[i] = fill[lo:hi]
    for i, m in enumerate(main):
        out.append(m)
        out.extend(pos.get(i, []))
    return out
```

```python
from asmlib import Asm, interleave
import struct
NAME = "parallel_sum__ssm_conv_s4__geglu_ffn__prompt"
HDR = open("cdna_kernels/%s.s.ref" % NAME).read().split("; Override launch geometry")[0]
XNF = 0
XNT = 2 << 20
HF = 4 << 20
PT = 12 << 20
STAMP = 16 << 20
def f2u(x): return struct.unpack('<I', struct.pack('<f', x))[0]
def fx(x): return '0x%08x' % f2u(x)

S_X, S_ARE, S_AIM, S_BRE, S_BIM, S_CRE, S_CIM, S_LDT = 16, 18, 20, 22, 24, 26, 28, 30
S_DSK, S_WG, S_WU, S_WD, S_OUT, S_DBG, S_WS = 32, 36, 38, 40, 42, 44, 46

def srd(a, dst, ptr, size, off=0):
    if off:
        a("s_add_u32 s%d, s%d, 0x%x" % (dst, ptr, off))
        a("s_addc_u32 s%d, s%d, 0" % (dst + 1, ptr + 1))
    else:
        a("s_mov_b32 s%d, s%d" % (dst, ptr))
        a("s_mov_b32 s%d, s%d" % (dst + 1, ptr + 1))
    a("s_mov_b32 s%d, 0x%x" % (dst + 2, size))
    a("s_mov_b32 s%d, 0x00020000" % (dst + 3))

def begin(a, label):
    a.raw(".globl %s" % label)
    a.raw(".p2align 8")
    a.raw(".type %s,@function" % label)
    a.label(label)
    a.reset()

def desc(label, nv=256, acc=256):
    return """.amdhsa_kernel %s
  .amdhsa_next_free_vgpr %d
  .amdhsa_next_free_sgpr 102
  .amdhsa_accum_offset %d
  .amdhsa_group_segment_fixed_size 0
  .amdhsa_kernarg_size 128
  .amdhsa_user_sgpr_count 2
  .amdhsa_user_sgpr_kernarg_segment_ptr 1
  .amdhsa_system_sgpr_workgroup_id_x 1
.end_amdhsa_kernel
""" % (label, nv, acc)

class Stamps:
    def __init__(self, on, kidx, base=70):
        self.on = on; self.n = 0; self.base = base; self.kidx = kidx
    def mark(self, a):
        if not self.on: return
        a("s_memtime s[%d:%d]" % (self.base + 2 * self.n, self.base + 2 * self.n + 1))
        self.n += 1
    def dump(self, a, vt=0):
        if not self.on: return
        a.wait_all()
        srd(a, 4, S_WS, 1 << 20, STAMP)
        a("s_lshl_b32 s3, s2, 3")
        a("s_add_u32 s3, s3, s101")
        a("s_add_u32 s3, s3, %d" % (self.kidx * 2048))
        a("s_lshl_b32 s3, s3, 6")
        a("v_mov_b32 v%d, 0" % (vt + 1))
        for i in range(self.n):
            a("v_mov_b32 v%d, s%d" % (vt, self.base + 2 * i))
            a("buffer_store_dword v%d, v%d, s[4:7], s3 offen offset:%d" % (vt, vt + 1, 4 * i))

def dpp_sum(a, v, sdst):
    a("v_add_f32_dpp v%d, v%d, v%d quad_perm:[1,0,3,2] row_mask:0xf bank_mask:0xf" % (v, v, v))
    a("v_add_f32_dpp v%d, v%d, v%d quad_perm:[2,3,0,1] row_mask:0xf bank_mask:0xf" % (v, v, v))
    a("v_add_f32_dpp v%d, v%d, v%d row_half_mirror row_mask:0xf bank_mask:0xf" % (v, v, v))
    a("v_add_f32_dpp v%d, v%d, v%d row_mirror row_mask:0xf bank_mask:0xf" % (v, v, v))
    a("v_add_f32_dpp v%d, v%d, v%d row_bcast:15 row_mask:0xa bank_mask:0xf" % (v, v, v))
    a("v_add_f32_dpp v%d, v%d, v%d row_bcast:31 row_mask:0xc bank_mask:0xf" % (v, v, v))
    a("v_readlane_b32 s%d, v%d, 63" % (sdst, v))
```

```python
from common import *

def gen_k0(a, label, stamps=False):
    st = Stamps(stamps, 0)
    begin(a, label)
    a("s_load_dwordx16 s[16:31], s[0:1], 0")
    a("s_load_dwordx16 s[32:47], s[0:1], 64")
    st.mark(a)
    a("s_cmp_ge_u32 s2, 256")
    a("s_cbranch_scc1 %s_end" % label)
    a("v_lshrrev_b32 v1, 6, v0")
    a("v_and_b32 v2, 63, v0")
    a("v_readfirstlane_b32 s101, v1")
    a("v_lshlrev_b32 v2, 4, v2")
    a("s_lshl_b32 s3, s2, 3")
    a("s_add_u32 s3, s3, s101")
    a("s_lshl_b32 s3, s3, 10")
    srd(a, 4, S_X, 2 << 20)
    a("buffer_load_dwordx4 v[4:7], v2, s[4:7], s3 offen")
    srd(a, 8, S_WS, 4 << 20)
    a("s_mul_i32 s12, s101, 1088")
    a("v_add_u32 v3, s12, v2")
    a("v_and_b32 v20, 7, v0")
    a("v_lshrrev_b32 v21, 3, v0")
    a("v_mul_u32_u24 v22, 1088, v20")
    a("v_lshl_add_u32 v22, v21, 4, v22")
    a("v_lshlrev_b32 v23, 9, v21")
    a("v_lshl_add_u32 v23, v20, 4, v23")
    a("s_lshr_b32 s13, s2, 2")
    a("s_lshl_b32 s13, s13, 15")
    a("s_and_b32 s14, s2, 3")
    a("s_lshl_b32 s14, s14, 7")
    a("s_add_u32 s13, s13, s14")
    a("v_bfe_u32 v24, v0, 2, 2")
    a("v_mul_u32_u24 v24, 1088, v24")
    a("v_lshrrev_b32 v25, 4, v0")
    a("v_lshl_add_u32 v24, v25, 5, v24")
    a("v_and_b32 v25, 3, v0")
    a("v_lshl_add_u32 v24, v25, 3, v24")
    a("v_lshlrev_b32 v26, 4, v0")
    a("s_lshl_b32 s14, s2, 13")
    a("s_add_u32 s14, s14, 0x%x" % XNT)
    for i in range(4):
        a("v_lshlrev_b32 v%d, 16, v%d" % (8 + 2 * i, 4 + i))
        a("v_and_b32 v%d, 0xffff0000, v%d" % (9 + 2 * i, 4 + i))
    st.mark(a)
    a("v_add_f32 v16, v8, v9")
    a("v_add_f32 v17, v10, v11")
    a("v_add_f32 v18, v12, v13")
    a("v_add_f32 v19, v14, v15")
    a("v_add_f32 v16, v16, v17")
    a("v_add_f32 v18, v18, v19")
    a("v_add_f32 v16, v16, v18")
    dpp_sum(a, 16, 15)
    a("v_mov_b32 v16, %s" % fx(1.0 / 512))
    a("v_mul_f32 v16, s15, v16")
    a("v_sub_f32 v17, v8, v16")
    a("v_sub_f32 v18, v9, v16")
    a("v_mul_f32 v17, v17, v17")
    a("v_mul_f32 v18, v18, v18")
    for i in range(1, 4):
        a("v_sub_f32 v4, v%d, v16" % (8 + 2 * i))
        a("v_sub_f32 v5, v%d, v16" % (9 + 2 * i))
        a("v_fmac_f32 v17, v4, v4")
        a("v_fmac_f32 v18, v5, v5")
    a("v_add_f32 v17, v17, v18")
    a("v_cvt_pk_bf16_f32 v16, v16, v16")
    a("v_and_b32 v16, 0xffff0000, v16")
    for i in range(8):
        a("v_sub_f32 v%d, v%d, v16" % (8 + i, 8 + i))
    dpp_sum(a, 17, 15)
    for i in range(4):
        a("v_cvt_pk_bf16_f32 v%d, v%d, v%d" % (4 + i, 8 + 2 * i, 9 + 2 * i))
    a("v_mov_b32 v17, %s" % fx(1.0 / 512))
    a("v_mul_f32 v17, s15, v17")
    a("v_cvt_pk_bf16_f32 v17, v17, v17")
    a("v_and_b32 v17, 0xffff0000, v17")
    a("v_add_f32 v17, %s, v17" % fx(1e-5))
    a("v_cvt_pk_bf16_f32 v17, v17, v17")
    a("v_and_b32 v17, 0xffff0000, v17")
    a("v_sqrt_f32 v17, v17")
    for i in range(4):
        a("v_lshlrev_b32 v%d, 16, v%d" % (8 + 2 * i, 4 + i))
        a("v_and_b32 v%d, 0xffff0000, v%d" % (9 + 2 * i, 4 + i))
    a("v_cvt_pk_bf16_f32 v17, v17, v17")
    a("v_and_b32 v17, 0xffff0000, v17")
    a("v_rcp_f32 v18, v17")
    a("v_fma_f32 v19, -v17, v18, 1.0")
    a("v_fmac_f32 v18, v19, v18")
    for i in range(8):
        a("v_mul_f32 v%d, v%d, v18" % (8 + i, 8 + i))
    for i in range(4):
        a("v_cvt_pk_bf16_f32 v%d, v%d, v%d" % (4 + i, 8 + 2 * i, 9 + 2 * i))
    a("ds_write_b128 v3, v[4:7]")
    a.barrier()
    a("ds_read_b128 v[4:7], v22")
    a("ds_read_b64_tr_b16 v[8:9], v24")
    a("ds_read_b64_tr_b16 v[10:11], v24 offset:%d" % (4 * 1088))
    a("buffer_store_dwordx4 v[4:7], v23, s[8:11], s13 offen")
    a("buffer_store_dwordx4 v[8:11], v26, s[8:11], s14 offen")
    st.mark(a)
    st.dump(a, 30)
    a.label(label + "_end")
    a("s_endpgm")
```

```python
from common import *
import math
KR = 131072
KCP = 4480
TB = KR + 4 * KCP
TST = 5136
LDS1 = TB + 2 * TST
RS = 528
UB = 0; UCP = 5648; UCH = 4 * UCP; URS = 320
PB = 49152; PBS = 544
LOG2E = math.log2(math.e)

def slot_addr(u): return ((u & 1) * 4 + ((u >> 1) & 3)) * 16384

def cmul(a, d, x, y):
    a("v_pk_mul_f32 v[%d:%d], v[%d:%d], v[%d:%d] op_sel:[0,0] op_sel_hi:[1,0]" % (d, d + 1, x, x + 1, y, y + 1))
    a("v_pk_fma_f32 v[%d:%d], v[%d:%d], v[%d:%d], v[%d:%d] op_sel:[1,1,0] op_sel_hi:[0,1,1] neg_lo:[1,0,0]" % (d, d + 1, x, x + 1, y, y + 1, d, d + 1))

def cexp(a, d, zr, zi, L, t):
    a("v_mul_f32 v%d, %s, v%d" % (t, fx(L * LOG2E), zr))
    a("v_mul_f32 v%d, %s, v%d" % (t + 1, fx(L / (2 * math.pi)), zi))
    a("v_exp_f32 v%d, v%d" % (t, t))
    a("v_fract_f32 v%d, v%d" % (t + 1, t + 1))
    a("v_cos_f32 v%d, v%d" % (d, t + 1))
    a("v_sin_f32 v%d, v%d" % (d + 1, t + 1))
    a("v_mul_f32 v%d, v%d, v%d" % (d, d, t))
    a("v_mul_f32 v%d, v%d, v%d" % (d + 1, d + 1, t))

C1 = -2.0 * math.sqrt(2.0 / math.pi) * LOG2E
C2 = C1 * 0.044715

def geglu(G, U, n, T, O, mimic=True):
    L = []
    if mimic:
        for j in range(0, n, 2):
            L.append("v_cvt_pk_bf16_f32 v%d, v%d, v%d" % (T + j, G + j, G + j + 1))
            L.append("v_cvt_pk_bf16_f32 v%d, v%d, v%d" % (T + j + 1, U + j, U + j + 1))
        for j in range(0, n, 2):
            L.append("v_lshlrev_b32 v%d, 16, v%d" % (G + j, T + j))
            L.append("v_and_b32 v%d, 0xffff0000, v%d" % (G + j + 1, T + j))
            L.append("v_lshlrev_b32 v%d, 16, v%d" % (U + j, T + j + 1))
            L.append("v_and_b32 v%d, 0xffff0000, v%d" % (U + j + 1, T + j + 1))
    for j in range(n): L.append("v_mul_f32 v%d, v%d, v%d" % (T + j, G + j, G + j))
    for j in range(n): L.append("v_fma_f32 v%d, v%d, s60, v1" % (T + j, T + j))
    for j in range(n): L.append("v_mul_f32 v%d, v%d, v%d" % (T + j, T + j, G + j))
    for j in range(n): L.append("v_exp_f32 v%d, v%d" % (T + j, T + j))
    for j in range(n): L.append("v_add_f32 v%d, 1.0, v%d" % (T + j, T + j))
    for j in range(n): L.append("v_rcp_f32 v%d, v%d" % (T + j, T + j))
    for j in range(n): L.append("v_mul_f32 v%d, v%d, v%d" % (G + j, G + j, T + j))
    if mimic:
        for j in range(0, n, 2):
            L.append("v_cvt_pk_bf16_f32 v%d, v%d, v%d" % (T + j, G + j, G + j + 1))
        for j in range(0, n, 2):
            L.append("v_lshlrev_b32 v%d, 16, v%d" % (G + j, T + j))
            L.append("v_and_b32 v%d, 0xffff0000, v%d" % (G + j + 1, T + j))
    for j in range(n): L.append("v_mul_f32 v%d, v%d, v%d" % (G + j, G + j, U + j))
    for j in range(0, n, 2):
        L.append("v_cvt_pk_bf16_f32 v%d, v%d, v%d" % (O + j // 2, G + j, G + j + 1))
    return L

def mf32(c, A, B, first):
    return "v_mfma_f32_32x32x16_bf16 v[%d:%d], v[%d:%d], v[%d:%d], %s" % (c, c + 15, A, A + 3, B, B + 3, "0" if first else "v[%d:%d]" % (c, c + 15))

def gen_k1(a, label, stamps=False, mimic=True):
    st = Stamps(stamps, 1)
    begin(a, label)
    a("s_load_dwordx16 s[16:31], s[0:1], 0")
    a("s_load_dwordx16 s[32:47], s[0:1], 64")
    st.mark(a)
    a("s_cmp_ge_u32 s2, 256")
    a("s_cbranch_scc1 %s_end" % label)
    a("v_mov_b32 v31, v0")
    a("v_lshrrev_b32 v1, 6, v0")
    a("v_and_b32 v0, 63, v0")
    a("v_readfirstlane_b32 s101, v1")
    a("s_and_b32 s48, s2, 1")
    a("s_lshl_b32 s48, s48, 3")
    a("s_bfe_u32 s3, s2, 0x30003")
    a("s_add_u32 s48, s48, s3")
    a("s_bfe_u32 s49, s2, 0x20001")
    a("s_lshl_b32 s49, s49, 2")
    a("s_lshr_b32 s3, s2, 6")
    a("s_add_u32 s49, s49, s3")
    a("s_and_b32 s50, s2, 7")
    a("s_lshl_b32 s50, s50, 5")
    a("s_lshr_b32 s3, s2, 3")
    a("s_add_u32 s50, s50, s3")
    a("v_lshlrev_b32 v2, 4, v0")
    a("v_lshrrev_b32 v3, 3, v0")
    a("v_mul_u32_u24 v3, 3584, v3")
    a("v_and_b32 v4, 7, v0")
    a("v_lshlrev_b32 v4, 4, v4")
    a("v_and_b32 v5, 16, v0")
    a("v_lshlrev_b32 v5, 1, v5")
    a("v_xor_b32 v4, v4, v5")
    a("v_add_u32 v3, v3, v4")
    a("v_xor_b32 v4, 64, v3")
    a("s_lshl_b32 s52, s48, 2")
    a("s_lshr_b32 s3, s101, 1")
    a("s_add_u32 s52, s52, s3")
    a("s_lshl_b32 s52, s52, 15")
    a("s_and_b32 s3, s101, 1")
    a("s_lshl_b32 s3, s3, 11")
    a("s_add_u32 s52, s52, s3")
    a("s_mul_i32 s57, s101, %d" % (8 * 3584))
    a("s_lshl_b32 s3, s49, 7")
    a("s_add_u32 s53, s57, s3")
    a("s_lshl_b32 s54, s101, 11")
    a("s_lshl_b32 s55, s101, 10")
    a("s_and_b32 s62, s101, 1")
    a("s_bfe_u32 s63, s101, 0x10001")
    a("s_lshl_b32 s3, s50, 1")
    a("s_add_u32 s3, s3, s62")
    a("s_lshl_b32 s3, s3, 8")
    a("s_lshl_b32 s64, s63, 7")
    a("s_add_u32 s3, s3, s64")
    a("v_lshl_add_u32 v6, v0, 1, s3")
    for i in range(6): a("v_mov_b32 v%d, 0" % (32 + i))
    a("s_lshl_b32 s3, s50, 2")
    a("s_load_dword s65, s[%d:%d], s3" % (S_LDT, S_LDT + 1))
    a("s_load_dword s66, s[%d:%d], s3" % (S_DSK, S_DSK + 1))
    for i, p in enumerate((S_ARE, S_AIM, S_BRE, S_BIM, S_CRE, S_CIM)):
        a("global_load_short_d16_hi v%d, v6, s[%d:%d]" % (32 + i, p, p + 1))
    srd(a, 4, S_WS, 2 << 20, XNF)
    srd(a, 8, S_WG, 512 * 3584)
    srd(a, 12, S_WU, 512 * 3584)

    def issue(j):
        tg = "P%d" % j
        if j < 8:
            a("s_add_u32 m0, s54, %d" % slot_addr(2 * j))
            a("s_add_u32 s3, s52, %d" % (j * 4096))
            a("buffer_load_dwordx4 v2, s[4:7], s3 offen lds", tag=tg)
            a("buffer_load_dwordx4 v2, s[4:7], s3 offen offset:1024 lds", tag=tg)
            a("s_add_u32 m0, s55, %d" % slot_addr(2 * j + 1))
            a("s_add_u32 s3, s53, %d" % (j * 64 * 3584))
            a("buffer_load_dwordx4 v3, s[8:11], s3 offen lds", tag=tg)
            a("s_add_u32 m0, s55, %d" % (slot_addr(2 * j + 1) + 8192))
            a("buffer_load_dwordx4 v4, s[12:15], s3 offen lds", tag=tg)
        else:
            for e in range(2):
                u = 2 * j + e
                if j < 10: so, rows, vg = "s58", 128 * (u - 16), 7
                else: so, rows, vg = "s59", 256 * (u - 20), 9
                a("s_add_u32 m0, s55, %d" % slot_addr(u))
                a("s_add_u32 s3, %s, %d" % (so, rows * 3584))
                a("buffer_load_dwordx4 v%d, s[8:11], s3 offen lds" % vg, tag=tg)
                a("s_add_u32 m0, s55, %d" % (slot_addr(u) + 8192))
                a("buffer_load_dwordx4 v%d, s[12:15], s3 offen lds" % (vg + 1), tag=tg)
    issue(0); issue(1)
    a("v_lshrrev_b32 v7, 2, v0")
    a("v_mul_u32_u24 v7, 3584, v7")
    a("v_and_b32 v8, 3, v0")
    a("v_lshl_add_u32 v7, v8, 4, v7")
    a("v_xor_b32 v8, 32, v7")
    a("v_lshrrev_b32 v9, 1, v0")
    a("v_xor_b32 v10, 4, v9")
    a("v_mul_u32_u24 v9, 3584, v9")
    a("v_mul_u32_u24 v10, 3584, v10")
    a("v_and_b32 v5, 1, v0")
    a("v_lshl_add_u32 v9, v5, 4, v9")
    a("v_lshl_add_u32 v10, v5, 4, v10")
    a("s_lshl_b32 s58, s57, 1")
    a("s_lshl_b32 s3, s49, 6")
    a("s_add_u32 s58, s58, s3")
    a("s_add_u32 s58, s58, 2048")
    a("s_lshl_b32 s59, s57, 2")
    a("s_lshl_b32 s3, s49, 5")
    a("s_add_u32 s59, s59, s3")
    a("s_add_u32 s59, s59, 3072")
    for i in range(4): a("v_mov_b32 v%d, 0" % (40 + i))
    a("v_lshrrev_b32 v5, 5, v31")
    a("v_mul_u32_u24 v5, %d, v5" % KCP)
    a("v_and_b32 v44, 31, v31")
    a("v_min_u32 v44, 23, v44")
    a("v_lshl_add_u32 v5, v44, 4, v5")
    a("v_add_u32 v5, %d, v5" % (KR + 4096))
    a("v_mov_b32 v44, %d" % TB)
    a("s_cmp_ge_u32 s101, 2")
    a("s_cbranch_scc1 %s_nz" % label)
    a.save("nz")
    a("ds_write_b128 v5, v[40:43]")
    a("ds_write_b128 v44, v[40:43]")
    a("ds_write_b128 v44, v[40:43] offset:%d" % TST)
    a.label(label + "_nz")
    a.merge("nz")
    a("s_lshl_b32 s3, s62, 4")
    a("s_lshr_b32 s65, s65, s3")
    a("s_lshl_b32 s65, s65, 16")
    LH = struct.unpack('<f', struct.pack('<I', f2u(LOG2E) & 0xffffff00))[0]
    a("v_mov_b32 v40, %s" % fx(LH))
    a("v_mov_b32 v41, %s" % fx(LOG2E - LH))
    a("v_mul_f32 v40, s65, v40")
    a("v_mul_f32 v41, s65, v41")
    a("v_exp_f32 v40, v40")
    a("v_exp_f32 v41, v41")
    a("v_mul_f32 v40, v40, v41")
    a("v_cvt_pk_bf16_f32 v40, v40, v40")
    a("v_and_b32 v40, 0xffff0000, v40")
    a("s_lshl_b32 s3, s62, 16")
    a("s_lshl_b32 s64, s63, 8")
    a("s_add_u32 s3, s3, s64")
    a("s_add_u32 s3, s3, 32768")
    a("v_lshl_add_u32 v45, v0, 2, s3")
    a("v_mul_f32 v32, v40, v32")
    a("v_mul_f32 v33, v40, v33")
    st.mark(a)
    def put(row, r):
        a("v_cvt_pk_bf16_f32 v%d, v%d, v%d" % (put.t, r, r + 1))
        a("ds_write_b32 v45, v%d offset:%d" % (put.t, row * RS))
        put.t = 46 + (put.t - 46 + 1) % 4
    put.t = 46
    a("s_cmp_ge_u32 s101, 4")
    a("s_cbranch_scc1 %s_role1" % label)
    a.save("role")
    OR = 22
    F = lambda b: 52 + 2 * (b % 8)
    cexp(a, F(1), 32, 33, 8.0, 50)
    a("v_mov_b32 v46, 0x3f80")
    a("ds_write_b32 v45, v46 offset:%d" % (OR * RS))
    put.t = 47
    cmul(a, F(2), F(1), F(1))
    put(OR + 1, F(1))
    cmul(a, F(3), F(2), F(1))
    cmul(a, 70, F(2), F(2))
    put(OR + 2, F(2)); put(OR + 3, F(3)); put(OR + 4, 70)
    for b in range(5, 32):
        src = 70 if b == 8 else F(b - 4)
        cmul(a, F(b), src, 70)
        if b > 5: put(OR + b - 1, F(b - 1))
    put(OR + 31, F(31))
    a("s_branch %s_rolej" % label)
    a.save("rolej")
    a.label(label + "_role1")
    a.restore("role")
    a("v_mul_f32 v34, v40, v34")
    a("v_mul_f32 v35, v40, v35")
    a("v_xor_b32 v33, 0x80000000, v33")
    cexp(a, 52, 32, 33, 1.0, 50)
    cmul(a, 60, 36, 34)
    cexp(a, 58, 32, 33, 256.0, 50)
    a("v_xor_b32 v61, 0x80000000, v61")
    cmul(a, 54, 52, 52)
    G = lambda i: 60 + 2 * i
    cmul(a, G(1), G(0), 52)
    put(0, G(0))
    cmul(a, 56, 54, 54)
    cmul(a, G(2), G(0), 54)
    put(1, G(1))
    cmul(a, G(3), G(1), 54)
    put(2, G(2))
    for i in range(4):
        cmul(a, G(4 + i), G(i), 56)
        put(3 + i, G(3 + i))
    for i in range(4):
        cmul(a, G(8 + i), G(2 * i), 58)
        put(7 + i, G(7 + i))
    cmul(a, G(12), G(8), 58)
    put(11, G(11))
    cmul(a, G(20), G(10), 58)
    put(12, G(12))
    cmul(a, G(13), G(12), 58)
    put(20, G(20))
    cmul(a, G(21), G(20), 58)
    put(13, G(13))
    cmul(a, G(14), G(13), 58)
    put(21, G(21))
    for i in range(15, 19):
        cmul(a, G(i), G(i - 1), 58)
        put(i - 1, G(i - 1))
    put(18, G(18))
    a.label(label + "_rolej")
    a.merge("rolej")
    a("v_and_b32 v46, 15, v0")
    a("v_mul_u32_u24 v47, %d, v46" % RS)
    a("v_lshrrev_b32 v48, 4, v0")
    a("v_lshl_add_u32 v47, v48, 4, v47")
    a("s_lshl_b32 s3, s62, 16")
    a("s_add_u32 s3, s3, 32768")
    a("s_mul_i32 s64, s63, %d" % (16 * RS))
    a("s_add_u32 s64, s64, s3")
    a("v_add_u32 v49, s64, v47")
    a("s_lshr_b32 s67, s101, 2")
    a("s_mul_i32 s64, s67, %d" % (16 * RS))
    a("s_add_u32 s64, s64, s3")
    a("s_add_u32 s64, s64, %d" % (OR * RS))
    a("v_add_u32 v50, s64, v47")
    pk = lambda l: (2 * l[0] | (2 * l[1]) << 16, 2 * l[2] | (2 * l[3]) << 16)
    b0, b1, s0_, s1_ = pk([0, 4, 256, 512]), pk([1536, 516, 2304, 2304]), pk([1, 1, 2, 256]), pk([256, 256, 0, 0])
    a("s_cmp_eq_u32 s63, 0")
    for i in range(2):
        a("s_mov_b32 s%d, 0x%x" % (68 + i, b1[i]))
        a("s_cmov_b32 s%d, 0x%x" % (68 + i, b0[i]))
    a("v_lshlrev_b32 v48, 4, v48")
    a("v_lshrrev_b64 v[52:53], v48, s[68:69]")
    for i in range(2):
        a("s_mov_b32 s%d, 0x%x" % (68 + i, s1_[i]))
        a("s_cmov_b32 s%d, 0x%x" % (68 + i, s0_[i]))
    a("v_lshrrev_b64 v[54:55], v48, s[68:69]")
    a("v_and_b32 v52, 0xffff, v52")
    a("v_and_b32 v54, 0xffff, v54")
    a("s_mul_i32 s3, s62, %d" % TST)
    a("s_lshl_b32 s64, s67, 8")
    a("s_add_u32 s3, s3, s64")
    a("s_add_u32 s3, s3, %d" % (TB + 16))
    a("v_lshl_add_u32 v52, v46, 4, v52")
    a("v_add_u32 v52, s3, v52")
    a("v_add_u32 v53, v52, v54")
    a("v_add_u32 v55, v53, v54")
    a("v_add_u32 v54, v55, v54")
    a.barrier()
    st.mark(a)
    for s in range(8):
        a("ds_read_b128 v[%d:%d], v49 offset:%d" % (64 + 8 * s, 67 + 8 * s, 64 * s))
        a("ds_read_b128 v[%d:%d], v50 offset:%d" % (68 + 8 * s, 71 + 8 * s, 64 * s))
    a("v_and_b32 v32, 255, v31")
    a("v_lshlrev_b32 v60, 4, v32")
    a("v_sub_u32 v32, 4094, v60")
    a("v_cvt_f32_i32 v32, v32")
    for j in range(1, 9):
        a("v_subrev_f32 v%d, %s, v32" % (32 + j, fx(2.0 * j)))
    for j in range(0, 8, 2):
        a("v_cvt_pk_bf16_f32 v%d, v%d, v%d" % (33 + j, 32 + j, 33 + j))
    a("v_cvt_pk_bf16_f32 v40, v40, v40")
    for j in range(0, 8, 2):
        a("v_lshlrev_b32 v%d, 16, v%d" % (32 + j, 33 + j))
        a("v_and_b32 v%d, 0xffff0000, v%d" % (33 + j, 33 + j))
    a("v_and_b32 v40, 0xffff0000, v40")
    a("s_mul_i32 s3, s67, %d" % TST)
    a("s_add_u32 s3, s3, %d" % (TB + 16))
    for j in range(9):
        a("v_cvt_i32_f32 v%d, v%d" % (32 + j, 32 + j))
    for j in range(9):
        a("v_add_u32 v%d, s3, v%d" % (32 + j, 32 + j))
    a("s_mul_i32 s3, s67, %d" % (2 * KCP))
    a("s_add_u32 s3, s3, %d" % KR)
    a("v_add_u32 v60, s3, v60")
    for s in range(8):
        a("v_mfma_f32_16x16x32_bf16 v[56:59], v[%d:%d], v[%d:%d], %s" % (64 + 8 * s, 67 + 8 * s, 68 + 8 * s, 71 + 8 * s, "0" if s == 0 else "v[56:59]"))
    a("v_cvt_pk_bf16_f32 v56, v56, v57")
    a("v_cvt_pk_bf16_f32 v58, v58, v59")
    a("ds_write_b16 v52, v56")
    a("ds_write_b16_d16_hi v53, v56")
    a("ds_write_b16 v55, v58")
    a("ds_write_b16_d16_hi v54, v58")
    a.barrier()
    issue(2); issue(3)
    for j in range(9):
        a("ds_read_u16 v%d, v%d" % (76 + j, 32 + j))
    for i in range(4):
        a("v_lshl_or_b32 v%d, v%d, 16, v%d" % (64 + i, 77 + 2 * i, 76 + 2 * i))
        a("v_lshl_or_b32 v%d, v%d, 16, v%d" % (70 + i, 78 + 2 * i, 77 + 2 * i))
    a("ds_write_b128 v60, v[64:67] offset:%d" % KCP)
    a("ds_write_b128 v60, v[70:73]")
    st.mark(a)
    a("s_and_b32 s61, s101, 3")
    a("s_lshl_b32 s3, s61, 12")
    a("v_add_u32 v11, s3, v2")
    a("v_lshrrev_b32 v5, 5, v0")
    a("v_bfe_u32 v6, v0, 2, 2")
    a("v_lshl_add_u32 v5, v5, 3, v6")
    a("v_and_b32 v6, 1, v0")
    a("v_lshlrev_b32 v20, 4, v6")
    a("v_and_b32 v6, 2, v0")
    a("v_lshl_or_b32 v20, v6, 2, v20")
    a("v_and_b32 v6, 16, v0")
    a("v_lshl_or_b32 v20, v6, 9, v20")
    a("v_lshl_or_b32 v12, v5, 7, v20")
    a("v_and_b32 v21, 24, v0")
    a("v_lshl_or_b32 v12, v21, 2, v12")
    a("s_lshl_b32 s3, s67, 6")
    a("s_or_b32 s3, s3, 0x10000")
    a("v_xor_b32 v12, s3, v12")
    a("v_xor_b32 v13, 32, v12")
    a("v_lshl_or_b32 v14, v5, 6, v20")
    a("v_lshl_or_b32 v14, v6, 1, v14")
    a("s_lshl_b32 s3, s67, 5")
    a("v_xor_b32 v14, s3, v14")
    a("v_add_u32 v15, 0x10000, v14")
    a("v_lshl_or_b32 v16, v5, 5, v20")
    a("v_lshl_or_b32 v16, v6, 3, v16")
    a("s_lshl_b32 s3, s67, 16")
    a("s_add_u32 s3, s3, 32768")
    a("v_add_u32 v16, s3, v16")
    a("v_xor_b32 v17, 128, v16")
    a("v_mov_b32 v1, %s" % fx(C1))
    a("s_mov_b32 s60, %s" % fx(C2))
    a("s_lshl_b32 s56, s48, 2")
    a("s_add_u32 s56, s56, s61")
    a("s_mul_i32 s56, s56, %d" % (112 * 1024))
    XB = 128; WF = 96; ACA = 32; ACB = 64; ACC = 80
    for j in range(8):
        a.wait_tag("P%d" % j)
        a.barrier()
        if j == 0: st.mark(a)
        if j >= 1: issue(j + 3)
        xs = slot_addr(2 * j); ws = slot_addr(2 * j + 1) - 65536
        for ks in range(4):
            r = XB + 4 * (4 * j + ks)
            a("ds_read_b128 v[%d:%d], v11 offset:%d" % (r, r + 3, xs + ks * 1024))
            for t in range(2):
                rr = WF + 4 * (2 * ks + t)
                for jj in range(2):
                    a("ds_read_b64_tr_b16 v[%d:%d], v%d offset:%d" % (rr + 2 * jj, rr + 2 * jj + 1, 12 + t, ws + ks * 2048 + jj * 512))
        for ks in range(4):
            for t in range(2):
                a(mf32(ACA + 16 * t, WF + 4 * (2 * ks + t), XB + 4 * (4 * j + ks), j == 0 and ks == 0))
    st.mark(a)
    srd(a, 4, S_WS, 64 * 112 * 1024, HF)
    a("s_lshl_b32 s3, s49, 2")
    a("s_lshl_b32 s64, s67, 1")
    a("s_add_u32 s3, s3, s64")
    a("s_lshl_b32 s3, s3, 10")
    a("s_add_u32 s64, s56, s3")
    for t in range(2):
        for i in geglu(ACA + 16 * t, ACA + 16 * t + 8, 8, 80, 88 + 4 * t, mimic): a(i)
        a("buffer_store_dwordx4 v[%d:%d], v2, s[4:7], s64 offen offset:%d" % (88 + 4 * t, 91 + 4 * t, 1024 * t))
    for j in (8, 9):
        a.wait_tag("P%d" % j)
        a.barrier()
        for e in range(2):
            so = (j - 8) * 16384
            for ks in range(8):
                rr = WF + 4 * ks
                for jj in range(2):
                    a("ds_read_b64_tr_b16 v[%d:%d], v%d offset:%d" % (rr + 2 * jj, rr + 2 * jj + 1, 14 + e, so + ks * 1024 + jj * 256))
            for ks in range(8):
                k = 16 * (j - 8) + 8 * e + ks
                a(mf32(ACB, WF + 4 * ks, XB + 4 * k, k == 0))
    st.mark(a)
    srd(a, 8, S_WS, 2 << 20, XNT)
    a("v_lshrrev_b32 v18, 1, v31")
    a("v_lshlrev_b32 v19, 13, v18")
    a("v_and_b32 v5, 1, v31")
    a("v_lshl_or_b32 v19, v5, 4, v19")
    a("s_lshl_b32 s3, s50, 5")
    a("v_add_u32 v19, s3, v19")
    a("v_subrev_u32 v20, 0x2000, v19")
    a("buffer_load_dwordx4 v[36:39], v19, s[8:11], 0 offen")
    a("buffer_load_dwordx4 v[32:35], v20, s[8:11], 0 offen")
    a("s_lshl_b32 s3, s49, 1")
    a("s_add_u32 s3, s3, s67")
    a("s_add_u32 s3, s3, 64")
    a("s_lshl_b32 s3, s3, 10")
    a("s_add_u32 s64, s56, s3")
    for i in geglu(ACB, ACB + 8, 8, 48, 56, mimic): a(i)
    a("buffer_store_dwordx4 v[56:59], v2, s[4:7], s64 offen")
    a.wait_tag("P10")
    a.barrier()
    a("s_add_u32 s3, s49, 96")
    a("s_lshl_b32 s3, s3, 10")
    a("s_add_u32 s64, s56, s3")
    a("v_add_u32 v21, s54, v2")
    a("v_xor_b32 v22, 0x2000, v21")
    a("s_cmp_eq_u32 s67, 0")
    a("s_cbranch_scc0 %s_c1" % label)
    a.save("c")
    for p in range(2):
        if p == 1:
            a.label(label + "_c1")
            a.restore("c")
        for half in range(2):
            for ks in range(8):
                rr = WF + 4 * ks
                for jj in range(2):
                    a("ds_read_b64_tr_b16 v[%d:%d], v%d offset:%d" % (rr + 2 * jj, rr + 2 * jj + 1, 16 + jj, (8 * half + ks) * 512))
            for ks in range(8):
                k = 16 * p + 8 * half + ks
                a(mf32(ACC, WF + 4 * ks, XB + 4 * k, half == 0 and ks == 0))
        o = 1 - p
        a("ds_write_b128 v21, v[%d:%d] offset:49152" % (ACC + 4 * o, ACC + 4 * o + 3))
        a("ds_write_b128 v21, v[%d:%d] offset:%d" % (ACC + 8 + 4 * o, ACC + 11 + 4 * o, 49152 + 1024))
        if p == 1:
            for i in range(4):
                a("v_mov_b32 v%d, v%d" % (ACC + i, ACC + 4 + i))
                a("v_mov_b32 v%d, v%d" % (ACC + 8 + i, ACC + 12 + i))
        if p == 0:
            a("s_branch %s_cj" % label)
            a.save("cj")
    a.label(label + "_cj")
    a.merge("cj")
    a.barrier()
    st.mark(a)
    a("ds_read_b128 v[%d:%d], v22 offset:49152" % (ACC + 4, ACC + 7))
    a("ds_read_b128 v[%d:%d], v22 offset:%d" % (ACC + 12, ACC + 15, 49152 + 1024))
    a("v_lshrrev_b32 v19, 4, v18")
    a("v_mul_u32_u24 v19, %d, v19" % URS)
    a("v_and_b32 v20, 15, v18")
    a("v_lshl_add_u32 v19, v20, 4, v19")
    a("v_and_b32 v20, 1, v31")
    a("v_mul_u32_u24 v20, %d, v20" % UCH)
    a("v_add_u32 v19, v19, v20")
    for i in range(6): a("v_mov_b32 v%d, v%d" % (40 + i, 33 + i))
    a("ds_write_b128 v19, v[36:39] offset:%d" % (UB + URS))
    a("ds_write_b128 v19, v[42:45] offset:%d" % (UB + URS + UCP))
    a("ds_write_b128 v19, v[34:37] offset:%d" % (UB + URS + 2 * UCP))
    a("ds_write_b128 v19, v[40:43] offset:%d" % (UB + URS + 3 * UCP))
    for i in range(4): a("v_mov_b32 v%d, 0" % (48 + i))
    a("v_and_b32 v20, 15, v0")
    a("s_mul_i32 s3, s101, %d" % UCP)
    a("v_lshl_add_u32 v20, v20, 4, s3")
    a("ds_write_b128 v20, v[48:51] offset:%d" % UB)
    for i in range(4):
        a("v_add_f32 v%d, v%d, v%d" % (ACC + i, ACC + i, ACC + 4 + i))
        a("v_add_f32 v%d, v%d, v%d" % (ACC + 8 + i, ACC + 8 + i, ACC + 12 + i))
    for i in geglu(ACC, ACC + 8, 4, 52, 56, mimic): a(i)
    a("s_lshl_b32 s3, s67, 3")
    a("s_add_u32 s64, s64, s3")
    a("buffer_store_dwordx2 v[56:57], v2, s[4:7], s64 offen")
    a("s_lshr_b32 s61, s101, 1")
    a("v_and_b32 v5, 1, v0")
    a("v_mul_u32_u24 v11, %d, v5" % KCP)
    a("v_bfe_u32 v5, v0, 1, 4")
    a("v_lshrrev_b32 v6, 5, v0")
    a("v_sub_u32 v5, v6, v5")
    a("v_lshl_add_u32 v11, v5, 4, v11")
    a("s_mul_i32 s3, s62, %d" % (2 * KCP))
    a("s_lshl_b32 s64, s61, 9")
    a("s_add_u32 s3, s3, s64")
    a("s_add_u32 s3, s3, %d" % (KR + 240))
    a("v_add_u32 v11, s3, v11")
    a("v_and_b32 v5, 3, v0")
    a("v_mul_u32_u24 v12, %d, v5" % UCP)
    a("v_lshl_add_u32 v12, v6, 4, v12")
    a("s_mul_i32 s3, s62, %d" % UCH)
    a("v_add_u32 v12, s3, v12")
    a("v_bfe_u32 v13, v0, 2, 3")
    a("s_lshl_b32 s3, s61, 1")
    a("v_add_u32 v14, s3, v13")
    a("v_mad_u32_u24 v15, v14, %s, v12" % "s64" if False else "v_mul_u32_u24 v15, %d, v14" % URS)
    a("v_add_u32 v15, v15, v12")
    a("v_max_u32 v16, 6, v14")
    a("v_subrev_u32 v16, 6, v16")
    a("v_mul_u32_u24 v16, %d, v16" % URS)
    a("v_add_u32 v16, v16, v12")
    a("v_max_u32 v17, 5, v14")
    a("v_subrev_u32 v17, 5, v17")
    a("v_mul_u32_u24 v17, %d, v17" % URS)
    a("v_add_u32 v17, v17, v12")
    a("v_mul_u32_u24 v18, %d, v13" % PBS)
    a("v_lshl_add_u32 v18, v6, 6, v18")
    a("v_lshlrev_b32 v5, 3, v5")
    a("v_sub_u32 v18, v18, v5")
    a("s_mul_i32 s3, s101, %d" % (16 * PBS))
    a("s_add_u32 s3, s3, %d" % (PB + 24))
    a("v_add_u32 v18, s3, v18")
    a.barrier()
    st.mark(a)
    T0 = 32; T1 = 48
    def rd(s):
        r = 128 + 16 * (s % 6)
        a("ds_read_b128 v[%d:%d], v11 offset:%d" % (r, r + 3, 32 * s))
        a("ds_read_b128 v[%d:%d], v%d offset:%d" % (r + 4, r + 7, 16 + (s >> 3), UB + 32 * (s & 7)))
        a("ds_read_b128 v[%d:%d], v11 offset:%d" % (r + 8, r + 11, 2048 + 32 * s))
        a("ds_read_b128 v[%d:%d], v15 offset:%d" % (r + 12, r + 15, UB + 640 + URS * (s >> 3) + 32 * (s & 7)))
    rd(0); rd(1); rd(2)
    for s in range(16):
        r = 128 + 16 * (s % 6)
        a(mf32(T1, r, r + 4, s == 0))
        a(mf32(T0, r + 8, r + 4, s == 0))
        if s + 3 < 16: rd(s + 3)
        a(mf32(T1, r + 8, r + 12, False))
    for t in range(2):
        for g in range(4):
            for rr in range(2):
                r = T0 + 16 * t + 4 * g + 2 * rr
                a("ds_write_b64 v18, v[%d:%d] offset:%d" % (r, r + 1, t * 8 * PBS + 128 * g + 32 * rr))
    a("v_bfe_u32 v5, v31, 4, 4")
    a("v_and_b32 v6, 15, v31")
    a("v_mul_u32_u24 v19, %d, v5" % PBS)
    a("v_lshl_add_u32 v19, v6, 5, v19")
    a("s_mul_i32 s3, s67, %d" % (16 * PBS))
    a("s_add_u32 s3, s3, %d" % PB)
    a("v_add_u32 v19, s3, v19")
    a("v_mul_u32_u24 v20, %d, v5" % URS)
    a("v_lshl_add_u32 v20, v6, 4, v20")
    a("s_mul_i32 s3, s67, %d" % UCH)
    a("v_add_u32 v20, s3, v20")
    a("s_lshl_b32 s3, s67, 4")
    a("s_lshr_b32 s66, s66, s3")
    a("s_lshl_b32 s66, s66, 16")
    srd(a, 8, S_WS, 2 << 20, PT)
    a("s_lshl_b32 s64, s50, 13")
    a("v_lshlrev_b32 v21, 4, v31")
    a("ds_read_b128 v[96:99], v20 offset:%d" % (UB + URS))
    a.barrier()
    st.mark(a)
    for q in range(4):
        for hh in range(2):
            r = 64 + 8 * q + 4 * hh
            a("ds_read_b128 v[%d:%d], v19 offset:%d" % (r, r + 3, q * 32 * PBS + 16 * hh))
    for j in range(4):
        a("v_lshlrev_b32 v%d, 16, v%d" % (100 + 2 * j, 96 + j))
        a("v_and_b32 v%d, 0xffff0000, v%d" % (101 + 2 * j, 96 + j))
    for j in range(8): a("v_mul_f32 v%d, s66, v%d" % (100 + j, 100 + j))
    for j in range(4): a("v_cvt_pk_bf16_f32 v%d, v%d, v%d" % (96 + j, 100 + 2 * j, 101 + 2 * j))
    for j in range(4):
        a("v_lshlrev_b32 v%d, 16, v%d" % (100 + 2 * j, 96 + j))
        a("v_and_b32 v%d, 0xffff0000, v%d" % (101 + 2 * j, 96 + j))
    for j in range(8):
        a("v_add_f32 v%d, v%d, v%d" % (64 + j, 64 + j, 72 + j))
        a("v_add_f32 v%d, v%d, v%d" % (80 + j, 80 + j, 88 + j))
    for j in range(8): a("v_add_f32 v%d, v%d, v%d" % (64 + j, 64 + j, 80 + j))
    for j in range(4): a("v_cvt_pk_bf16_f32 v%d, v%d, v%d" % (96 + j, 64 + 2 * j, 65 + 2 * j))
    for j in range(4):
        a("v_lshlrev_b32 v%d, 16, v%d" % (64 + 2 * j, 96 + j))
        a("v_and_b32 v%d, 0xffff0000, v%d" % (65 + 2 * j, 96 + j))
    for j in range(8): a("v_add_f32 v%d, v%d, v%d" % (64 + j, 64 + j, 100 + j))
    for j in range(4): a("v_cvt_pk_bf16_f32 v%d, v%d, v%d" % (96 + j, 64 + 2 * j, 65 + 2 * j))
    a("buffer_store_dwordx4 v[96:99], v21, s[8:11], s64 offen")
    st.mark(a)
    st.dump(a, 30)
    a.label(label + "_end")
    a("s_endpgm")
```

```python
from common import *

def gen_k2(a, label, stamps=False):
    st = Stamps(stamps, 2)
    begin(a, label)
    a("s_load_dwordx16 s[16:31], s[0:1], 0")
    a("s_load_dwordx16 s[32:47], s[0:1], 64")
    st.mark(a)
    a("s_cmp_ge_u32 s2, 256")
    a("s_cbranch_scc1 %s_end" % label)
    a("v_lshrrev_b32 v1, 6, v0")
    a("v_and_b32 v0, 63, v0")
    a("v_readfirstlane_b32 s101, v1")
    a("s_and_b32 s48, s2, 7")
    a("s_lshl_b32 s48, s48, 2")
    a("s_bfe_u32 s3, s2, 0x20003")
    a("s_add_u32 s48, s48, s3")
    a("s_lshr_b32 s49, s2, 5")
    a("s_and_b32 s50, s101, 1")
    a("s_lshr_b32 s51, s101, 1")
    a("v_lshlrev_b32 v2, 4, v0")
    a("v_lshrrev_b32 v3, 3, v0")
    a("v_lshlrev_b32 v3, 10, v3")
    a("v_and_b32 v4, 7, v0")
    a("v_lshlrev_b32 v4, 4, v4")
    a("v_and_b32 v5, 16, v0")
    a("v_lshlrev_b32 v5, 2, v5")
    a("v_xor_b32 v5, v5, v4")
    a("v_or_b32 v3, v3, v5")
    a("s_mul_i32 s52, s51, 448")
    a("s_lshl_b32 s3, s50, 5")
    a("s_add_u32 s52, s52, s3")
    a("s_lshl_b32 s52, s52, 10")
    a("s_lshl_b32 s3, s49, 7")
    a("s_add_u32 s52, s52, s3")
    a("s_lshl_b32 s53, s48, 1")
    a("s_add_u32 s53, s53, s50")
    a("s_mul_i32 s53, s53, 112")
    a("s_mul_i32 s3, s51, 28")
    a("s_add_u32 s53, s53, s3")
    a("s_lshl_b32 s53, s53, 10")
    a("s_lshl_b32 s54, s51, 15")
    a("s_lshl_b32 s3, s50, 12")
    a("s_add_u32 s54, s54, s3")
    srd(a, 4, S_WD, 1792 * 1024)
    srd(a, 8, S_WS, 64 * 112 * 1024, HF)
    HB = 128
    def issue(u):
        for i in range(4):
            a("s_add_u32 m0, s54, %d" % ((u & 3) * 8192 + i * 1024))
            a("s_add_u32 s55, s52, %d" % ((64 * u + 8 * i) * 1024))
            a("buffer_load_dwordx4 v3, s[4:7], s55 offen lds", tag="W%d" % u)
        a("s_add_u32 s55, s53, %d" % (u * 4096))
        for i in range(4):
            r = HB + 4 * (4 * u + i)
            a("buffer_load_dwordx4 v[%d:%d], v2, s[8:11], s55 offen offset:%d" % (r, r + 3, i * 1024))
    for u in range(4): issue(u)
    srd(a, 12, S_WS, 2 << 20, PT)
    a("v_lshrrev_b32 v6, 3, v0")
    a("v_lshlrev_b32 v6, 12, v6")
    a("v_or_b32 v6, v6, v4")
    a("s_lshl_b32 s55, s49, 3")
    a("s_add_u32 s55, s55, s101")
    a("s_lshl_b32 s55, s55, 15")
    a("s_lshl_b32 s3, s48, 7")
    a("s_add_u32 s55, s55, s3")
    a("s_lshl_b32 s3, s101, 10")
    a("s_add_u32 m0, s3, 131072")
    a("buffer_load_dwordx4 v6, s[12:15], s55 offen lds", tag="PT")
    a("v_and_b32 v7, 31, v0")
    a("v_lshlrev_b32 v7, 10, v7")
    a("v_lshrrev_b32 v8, 5, v0")
    a("v_lshl_add_u32 v7, v8, 4, v7")
    a("s_lshl_b32 s56, s48, 1")
    a("s_add_u32 s56, s56, s50")
    a("s_lshl_b32 s56, s56, 15")
    a("s_lshl_b32 s3, s49, 7")
    a("s_add_u32 s56, s56, s3")
    a("s_lshl_b32 s3, s51, 5")
    a("s_add_u32 s56, s56, s3")
    srd(a, 12, S_X, 2 << 20)
    a("buffer_load_dwordx4 v[240:243], v7, s[12:15], s56 offen")
    srd(a, 12, S_OUT, 2 << 20)
    a("v_lshrrev_b32 v9, 5, v0")
    a("v_bfe_u32 v10, v0, 2, 2")
    a("v_lshl_add_u32 v9, v9, 3, v10")
    a("v_lshlrev_b32 v9, 7, v9")
    a("v_and_b32 v11, 16, v0")
    a("v_lshl_or_b32 v12, v11, 1, v9")
    a("v_and_b32 v11, 3, v0")
    a("v_lshl_or_b32 v13, v11, 3, v12")
    a("v_and_b32 v11, 1, v0")
    a("v_lshl_or_b32 v12, v11, 4, v12")
    a("v_and_b32 v11, 2, v0")
    a("v_lshl_or_b32 v12, v11, 2, v12")
    a("v_and_b32 v11, 8, v0")
    a("v_lshl_or_b32 v12, v11, 3, v12")
    a("s_lshl_b32 s3, s51, 15")
    a("v_add_u32 v10, s3, v12")
    a("v_xor_b32 v11, 64, v10")
    a("s_lshl_b32 s3, s51, 11")
    a("s_lshl_b32 s55, s50, 6")
    a("s_add_u32 s3, s3, s55")
    a("s_add_u32 s3, s3, 131072")
    a("v_add_u32 v13, s3, v13")
    a("s_lshl_b32 s3, s51, 15")
    a("s_lshl_b32 s55, s50, 13")
    a("s_add_u32 s3, s3, s55")
    a("v_add_u32 v14, s3, v2")
    a("s_lshl_b32 s3, s51, 11")
    a("s_add_u32 s3, s3, s55")
    a("v_add_u32 v15, s3, v2")
    a("v_add_u32 v16, 0x10000, v15")
    st.mark(a)
    ACC = 32
    AF = 64
    for u in range(7):
        a.wait_tag("W%d" % u)
        a.barrier()
        if u == 0: st.mark(a)
        if 1 <= u <= 3: issue(u + 3)
        for s in range(4):
            for t in range(2):
                r = AF + 4 * (2 * s + t)
                for jj in range(2):
                    a("ds_read_b64_tr_b16 v[%d:%d], v%d offset:%d" % (r + 2 * jj, r + 2 * jj + 1, 10 + t, (u & 3) * 8192 + s * 2048 + jj * 512))
        for s in range(4):
            for t in range(2):
                r = AF + 4 * (2 * s + t); h = HB + 4 * (4 * u + s); c = ACC + 16 * t
                a("v_mfma_f32_32x32x16_bf16 v[%d:%d], v[%d:%d], v[%d:%d], %s" % (c, c + 15, r, r + 3, h, h + 3, "0" if (u == 0 and s == 0) else "v[%d:%d]" % (c, c + 15)))
    st.mark(a)
    for d in range(4):
        for q in range(2):
            r = ACC + 8 * d + 4 * q
            a("ds_write_b128 v14, v[%d:%d] offset:%d" % (r, r + 3, d * 2048 + q * 1024))
    a.wait_tag("PT")
    a.barrier()
    for s in range(4):
        for q in range(2):
            r = 64 + 8 * s + 4 * q
            a("ds_read_b128 v[%d:%d], v%d offset:%d" % (r, r + 3, 15 + (s >> 1), (s & 1) * 32768 + q * 1024))
    a("ds_read_b64_tr_b16 v[96:97], v13")
    a("ds_read_b64_tr_b16 v[98:99], v13 offset:512")
    for j in range(8):
        a("v_add_f32 v%d, v%d, v%d" % (64 + j, 64 + j, 72 + j))
        a("v_add_f32 v%d, v%d, v%d" % (80 + j, 80 + j, 88 + j))
    for j in range(8):
        a("v_add_f32 v%d, v%d, v%d" % (64 + j, 64 + j, 80 + j))
    for j in range(4):
        a("v_cvt_pk_bf16_f32 v%d, v%d, v%d" % (72 + j, 64 + 2 * j, 65 + 2 * j))
        a("v_lshlrev_b32 v%d, 16, v%d" % (80 + 2 * j, 240 + j))
        a("v_and_b32 v%d, 0xffff0000, v%d" % (81 + 2 * j, 240 + j))
        a("v_lshlrev_b32 v%d, 16, v%d" % (88 + 2 * j, 96 + j))
        a("v_and_b32 v%d, 0xffff0000, v%d" % (89 + 2 * j, 96 + j))
    for j in range(8):
        a("v_add_f32 v%d, v%d, v%d" % (80 + j, 80 + j, 88 + j))
    for j in range(4):
        a("v_cvt_pk_bf16_f32 v%d, v%d, v%d" % (76 + j, 80 + 2 * j, 81 + 2 * j))
    for j in range(4):
        a("v_lshlrev_b32 v%d, 16, v%d" % (80 + 2 * j, 72 + j))
        a("v_and_b32 v%d, 0xffff0000, v%d" % (81 + 2 * j, 72 + j))
        a("v_lshlrev_b32 v%d, 16, v%d" % (88 + 2 * j, 76 + j))
        a("v_and_b32 v%d, 0xffff0000, v%d" % (89 + 2 * j, 76 + j))
    for j in range(8):
        a("v_add_f32 v%d, v%d, v%d" % (80 + j, 80 + j, 88 + j))
    for j in range(4):
        a("v_cvt_pk_bf16_f32 v%d, v%d, v%d" % (72 + j, 80 + 2 * j, 81 + 2 * j))
    a("buffer_store_dwordx4 v[72:75], v7, s[12:15], s56 offen")
    st.mark(a)
    st.dump(a, 30)
    a.label(label + "_end")
    a("s_endpgm")
```

```python
import sys
from common import *
from k0 import gen_k0
from k1 import gen_k1, LDS1
from k2 import gen_k2
def build(stamps=False, mimic=True, pf=True):
    a = Asm()
    L = ["ln_kernel", "g1_kernel", NAME + "_kernel"]
    hdr = HDR
    hdr += "; @launch kernel=%s grid=(256,1,1) block=(512,1,1) lds=8704\n" % L[0]
    hdr += "; @launch kernel=%s grid=(256,1,1) block=(512,1,1) lds=%d\n" % (L[1], LDS1)
    hdr += "; @launch kernel=%s grid=(256,1,1) block=(512,1,1) lds=%d\n" % (L[2], 131072 + 8192)
    hdr += '.amdgcn_target "amdgcn-amd-amdhsa--gfx950"\n.text\n'
    gen_k0(a, L[0], stamps); gen_k1(a, L[1], stamps, mimic, pf); gen_k2(a, L[2], stamps, pf)
    t = hdr + a.text() + '.section .rodata,"a"\n'
    for l, nv in zip(L, (32, 256, 256)):
        t += ".p2align 6\n" + desc(l, nv, nv)
    return t, a
if __name__ == "__main__":
    t, a = build(stamps="--stamps" in sys.argv, mimic="--nomimic" not in sys.argv, pf="--nopf" not in sys.argv)
    open(sys.argv[1], "w").write(t)
    print(a.cnt, "nops", a.nops)
```

```python
from asmlib import Asm, interleave
import struct
NAME = "parallel_sum__ssm_conv_s4__geglu_ffn__prompt"
HDR = open("cdna_kernels/%s.s.ref" % NAME).read().split("; Override launch geometry")[0]
XNF = 0
XNT = 2 << 20
HF = 4 << 20
PT = 12 << 20
STAMP = 16 << 20
def f2u(x): return struct.unpack('<I', struct.pack('<f', x))[0]
def fx(x): return '0x%08x' % f2u(x)

S_X, S_ARE, S_AIM, S_BRE, S_BIM, S_CRE, S_CIM, S_LDT = 16, 18, 20, 22, 24, 26, 28, 30
S_DSK, S_WG, S_WU, S_WD, S_OUT, S_DBG, S_WS = 32, 36, 38, 40, 42, 44, 46

def srd(a, dst, ptr, size, off=0):
    if off:
        a("s_add_u32 s%d, s%d, 0x%x" % (dst, ptr, off))
        a("s_addc_u32 s%d, s%d, 0" % (dst + 1, ptr + 1))
    else:
        a("s_mov_b32 s%d, s%d" % (dst, ptr))
        a("s_mov_b32 s%d, s%d" % (dst + 1, ptr + 1))
    a("s_mov_b32 s%d, 0x%x" % (dst + 2, size))
    a("s_mov_b32 s%d, 0x00020000" % (dst + 3))

def begin(a, label):
    a.raw(".globl %s" % label)
    a.raw(".p2align 8")
    a.raw(".type %s,@function" % label)
    a.label(label)
    a.reset()

def desc(label, nv=256, acc=256):
    return """.amdhsa_kernel %s
  .amdhsa_next_free_vgpr %d
  .amdhsa_next_free_sgpr 102
  .amdhsa_accum_offset %d
  .amdhsa_group_segment_fixed_size 0
  .amdhsa_kernarg_size 128
  .amdhsa_user_sgpr_count 2
  .amdhsa_user_sgpr_kernarg_segment_ptr 1
  .amdhsa_system_sgpr_workgroup_id_x 1
.end_amdhsa_kernel
""" % (label, nv, acc)

class Stamps:
    def __init__(self, on, kidx, base=70):
        self.on = on; self.n = 0; self.base = base; self.kidx = kidx
    def reg(self, n): return self.base + 2 * n if n < 10 else 16 + 2 * (n - 10)
    def mark(self, a):
        if not self.on: return
        a("s_memtime s[%d:%d]" % (self.base + 2 * self.n, self.base + 2 * self.n + 1))
        self.n += 1
    def dump(self, a, vt=0):
        if not self.on: return
        a.wait_all()
        srd(a, 4, S_WS, 1 << 20, STAMP)
        a("s_lshl_b32 s3, s2, 3")
        a("s_add_u32 s3, s3, s101")
        a("s_add_u32 s3, s3, %d" % (self.kidx * 2048))
        a("s_lshl_b32 s3, s3, 6")
        a("v_mov_b32 v%d, 0" % (vt + 1))
        for i in range(self.n):
            a("v_mov_b32 v%d, s%d" % (vt, self.reg(i)))
            a("buffer_store_dword v%d, v%d, s[4:7], s3 offen offset:%d" % (vt, vt + 1, 4 * i))

def dpp_sum(a, v, sdst):
    a("v_add_f32_dpp v%d, v%d, v%d quad_perm:[1,0,3,2] row_mask:0xf bank_mask:0xf" % (v, v, v))
    a("v_add_f32_dpp v%d, v%d, v%d quad_perm:[2,3,0,1] row_mask:0xf bank_mask:0xf" % (v, v, v))
    a("v_add_f32_dpp v%d, v%d, v%d row_half_mirror row_mask:0xf bank_mask:0xf" % (v, v, v))
    a("v_add_f32_dpp v%d, v%d, v%d row_mirror row_mask:0xf bank_mask:0xf" % (v, v, v))
    a("v_add_f32_dpp v%d, v%d, v%d row_bcast:15 row_mask:0xa bank_mask:0xf" % (v, v, v))
    a("v_add_f32_dpp v%d, v%d, v%d row_bcast:31 row_mask:0xc bank_mask:0xf" % (v, v, v))
    a("v_readlane_b32 s%d, v%d, 63" % (sdst, v))

def code_prefetch(a, label, vt, vtid, dst):
    a("s_getpc_b64 s[98:99]")
    a.label(label + "_pc")
    a("v_lshlrev_b32 v%d, 7, v%d" % (vt, vtid))
    a("v_min_u32 v%d, %s_fin-%s_pc-4, v%d" % (vt, label, label, vt))
    a("global_load_dword v%d, v%d, s[98:99]" % (dst, vt))
```

```python
from common import *
import math
KR = 131072
KCP = 4480
TB = KR + 4 * KCP
TST = 5136
LDS1 = TB + 2 * TST
RS = 528
UB = 0; UCP = 5648; UCH = 4 * UCP; URS = 320
PB = 49152; PBS = 544
LOG2E = math.log2(math.e)

def slot_addr(u): return ((u & 1) * 4 + ((u >> 1) & 3)) * 16384

def cmul(a, d, x, y):
    a("v_pk_mul_f32 v[%d:%d], v[%d:%d], v[%d:%d] op_sel:[0,0] op_sel_hi:[1,0]" % (d, d + 1, x, x + 1, y, y + 1))
    a("v_pk_fma_f32 v[%d:%d], v[%d:%d], v[%d:%d], v[%d:%d] op_sel:[1,1,0] op_sel_hi:[0,1,1] neg_lo:[1,0,0]" % (d, d + 1, x, x + 1, y, y + 1, d, d + 1))

def cexp(a, d, zr, zi, L, t):
    a("v_mul_f32 v%d, %s, v%d" % (t, fx(L * LOG2E), zr))
    a("v_mul_f32 v%d, %s, v%d" % (t + 1, fx(L / (2 * math.pi)), zi))
    a("v_exp_f32 v%d, v%d" % (t, t))
    a("v_fract_f32 v%d, v%d" % (t + 1, t + 1))
    a("v_cos_f32 v%d, v%d" % (d, t + 1))
    a("v_sin_f32 v%d, v%d" % (d + 1, t + 1))
    a("v_mul_f32 v%d, v%d, v%d" % (d, d, t))
    a("v_mul_f32 v%d, v%d, v%d" % (d + 1, d + 1, t))

C1 = -2.0 * math.sqrt(2.0 / math.pi) * LOG2E
C2 = C1 * 0.044715

def geglu(G, U, n, T, O, mimic=True):
    L = []
    if mimic:
        for j in range(0, n, 2):
            L.append("v_cvt_pk_bf16_f32 v%d, v%d, v%d" % (T + j, G + j, G + j + 1))
            L.append("v_cvt_pk_bf16_f32 v%d, v%d, v%d" % (T + j + 1, U + j, U + j + 1))
        for j in range(0, n, 2):
            L.append("v_lshlrev_b32 v%d, 16, v%d" % (G + j, T + j))
            L.append("v_and_b32 v%d, 0xffff0000, v%d" % (G + j + 1, T + j))
            L.append("v_lshlrev_b32 v%d, 16, v%d" % (U + j, T + j + 1))
            L.append("v_and_b32 v%d, 0xffff0000, v%d" % (U + j + 1, T + j + 1))
    for j in range(n): L.append("v_mul_f32 v%d, v%d, v%d" % (T + j, G + j, G + j))
    for j in range(n): L.append("v_fma_f32 v%d, v%d, s60, v1" % (T + j, T + j))
    for j in range(n): L.append("v_mul_f32 v%d, v%d, v%d" % (T + j, T + j, G + j))
    for j in range(n): L.append("v_exp_f32 v%d, v%d" % (T + j, T + j))
    for j in range(n): L.append("v_add_f32 v%d, 1.0, v%d" % (T + j, T + j))
    for j in range(n): L.append("v_rcp_f32 v%d, v%d" % (T + j, T + j))
    for j in range(n): L.append("v_mul_f32 v%d, v%d, v%d" % (G + j, G + j, T + j))
    if mimic:
        for j in range(0, n, 2):
            L.append("v_cvt_pk_bf16_f32 v%d, v%d, v%d" % (T + j, G + j, G + j + 1))
        for j in range(0, n, 2):
            L.append("v_lshlrev_b32 v%d, 16, v%d" % (G + j, T + j))
            L.append("v_and_b32 v%d, 0xffff0000, v%d" % (G + j + 1, T + j))
    for j in range(n): L.append("v_mul_f32 v%d, v%d, v%d" % (G + j, G + j, U + j))
    for j in range(0, n, 2):
        L.append("v_cvt_pk_bf16_f32 v%d, v%d, v%d" % (O + j // 2, G + j, G + j + 1))
    return L

def mf32(c, A, B, first):
    return "v_mfma_f32_32x32x16_bf16 v[%d:%d], v[%d:%d], v[%d:%d], %s" % (c, c + 15, A, A + 3, B, B + 3, "0" if first else "v[%d:%d]" % (c, c + 15))

def gen_k1(a, label, stamps=False, mimic=True, pf=True):
    st = Stamps(stamps, 1)
    begin(a, label)
    a("s_load_dwordx16 s[16:31], s[0:1], 0")
    a("s_load_dwordx16 s[32:47], s[0:1], 64")
    st.mark(a)
    a("s_cmp_ge_u32 s2, 256")
    a("s_cbranch_scc1 %s_end" % label)
    a("v_mov_b32 v31, v0")
    a("v_lshrrev_b32 v1, 6, v0")
    a("v_and_b32 v0, 63, v0")
    a("v_readfirstlane_b32 s101, v1")
    a("s_and_b32 s48, s2, 1")
    a("s_lshl_b32 s48, s48, 3")
    a("s_bfe_u32 s3, s2, 0x30003")
    a("s_add_u32 s48, s48, s3")
    a("s_bfe_u32 s49, s2, 0x20001")
    a("s_lshl_b32 s49, s49, 2")
    a("s_lshr_b32 s3, s2, 6")
    a("s_add_u32 s49, s49, s3")
    a("s_and_b32 s50, s2, 7")
    a("s_lshl_b32 s50, s50, 5")
    a("s_lshr_b32 s3, s2, 3")
    a("s_add_u32 s50, s50, s3")
    a("v_lshlrev_b32 v2, 4, v0")
    a("v_lshrrev_b32 v3, 3, v0")
    a("v_mul_u32_u24 v3, 3584, v3")
    a("v_and_b32 v4, 7, v0")
    a("v_lshlrev_b32 v4, 4, v4")
    a("v_and_b32 v5, 16, v0")
    a("v_lshlrev_b32 v5, 1, v5")
    a("v_xor_b32 v4, v4, v5")
    a("v_add_u32 v3, v3, v4")
    a("v_xor_b32 v4, 64, v3")
    a("s_lshl_b32 s52, s48, 2")
    a("s_lshr_b32 s3, s101, 1")
    a("s_add_u32 s52, s52, s3")
    a("s_lshl_b32 s52, s52, 15")
    a("s_and_b32 s3, s101, 1")
    a("s_lshl_b32 s3, s3, 11")
    a("s_add_u32 s52, s52, s3")
    a("s_mul_i32 s57, s101, %d" % (8 * 3584))
    a("s_lshl_b32 s3, s49, 7")
    a("s_add_u32 s53, s57, s3")
    a("s_lshl_b32 s54, s101, 11")
    a("s_lshl_b32 s55, s101, 10")
    a("s_and_b32 s62, s101, 1")
    a("s_bfe_u32 s63, s101, 0x10001")
    a("s_lshl_b32 s3, s50, 1")
    a("s_add_u32 s3, s3, s62")
    a("s_lshl_b32 s3, s3, 8")
    a("s_lshl_b32 s64, s63, 7")
    a("s_add_u32 s3, s3, s64")
    a("v_lshl_add_u32 v6, v0, 1, s3")
    for i in range(6): a("v_mov_b32 v%d, 0" % (32 + i))
    a("s_lshl_b32 s3, s50, 2")
    a("s_load_dword s65, s[%d:%d], s3" % (S_LDT, S_LDT + 1))
    a("s_load_dword s66, s[%d:%d], s3" % (S_DSK, S_DSK + 1))
    for i, p in enumerate((S_ARE, S_AIM, S_BRE, S_BIM, S_CRE, S_CIM)):
        a("global_load_short_d16_hi v%d, v6, s[%d:%d]" % (32 + i, p, p + 1))
    srd(a, 4, S_WS, 2 << 20, XNF)
    srd(a, 8, S_WG, 512 * 3584)
    srd(a, 12, S_WU, 512 * 3584)
    if pf:
        code_prefetch(a, label, 250, 31, 251)
        a("s_lshr_b32 s3, s2, 3")
        a("s_cmp_ge_u32 s101, 4")
        a("s_cbranch_scc1 %s_pfx" % label)
        a.save("pf")
        a("v_and_b32 v250, 127, v31")
        a("v_lshl_add_u32 v250, v250, 5, s3")
        a("v_lshrrev_b32 v249, 3, v250")
        a("v_mul_u32_u24 v249, 3584, v249")
        a("s_and_b32 s3, s3, 7")
        a("s_min_u32 s3, s3, 6")
        a("s_bfe_u32 s64, s2, 0x20001")
        a("s_lshl_b32 s68, s64, 2")
        a("s_add_u32 s68, s68, s3")
        a("s_lshl_b32 s69, s64, 1")
        a("s_add_u32 s69, s69, s3")
        a("s_add_u32 s69, s69, 12")
        a("s_cmp_ge_u32 s3, 4")
        a("s_cselect_b32 s68, s69, s68")
        a("s_add_u32 s69, s64, 24")
        a("s_cmp_ge_u32 s3, 6")
        a("s_cselect_b32 s68, s69, s68")
        a("s_lshl_b32 s68, s68, 7")
        a("s_cmp_ge_u32 s101, 2")
        a("s_cbranch_scc1 %s_pfu" % label)
        a("buffer_load_dword v252, v249, s[8:11], s68 offen")
        a("s_branch %s_pfj" % label)
        a.label(label + "_pfu")
        a("buffer_load_dword v252, v249, s[12:15], s68 offen")
        a("s_branch %s_pfj" % label)
        a.label(label + "_pfx")
        a.restore("pf")
        a("v_and_b32 v250, 255, v31")
        a("v_lshl_add_u32 v250, v250, 5, s3")
        a("v_lshlrev_b32 v250, 7, v250")
        a("s_and_b32 s3, s2, 1")
        a("s_lshl_b32 s3, s3, 20")
        a("buffer_load_dword v252, v250, s[4:7], s3 offen")
        a.label(label + "_pfj")

    def issue(j):
        tg = "P%d" % j
        if j < 8:
            a("s_add_u32 m0, s54, %d" % slot_addr(2 * j))
            a("s_add_u32 s3, s52, %d" % (j * 4096))
            a("buffer_load_dwordx4 v2, s[4:7], s3 offen lds", tag=tg)
            a("buffer_load_dwordx4 v2, s[4:7], s3 offen offset:1024 lds", tag=tg)
            a("s_add_u32 m0, s55, %d" % slot_addr(2 * j + 1))
            a("s_add_u32 s3, s53, %d" % (j * 64 * 3584))
            a("buffer_load_dwordx4 v3, s[8:11], s3 offen lds", tag=tg)
            a("s_add_u32 m0, s55, %d" % (slot_addr(2 * j + 1) + 8192))
            a("buffer_load_dwordx4 v4, s[12:15], s3 offen lds", tag=tg)
        else:
            for e in range(2):
                u = 2 * j + e
                if j < 10: so, rows, vg = "s58", 128 * (u - 16), 7
                else: so, rows, vg = "s59", 256 * (u - 20), 9
                a("s_add_u32 m0, s55, %d" % slot_addr(u))
                a("s_add_u32 s3, %s, %d" % (so, rows * 3584))
                a("buffer_load_dwordx4 v%d, s[8:11], s3 offen lds" % vg, tag=tg)
                a("s_add_u32 m0, s55, %d" % (slot_addr(u) + 8192))
                a("buffer_load_dwordx4 v%d, s[12:15], s3 offen lds" % (vg + 1), tag=tg)
    issue(0); issue(1)
    a("v_lshrrev_b32 v7, 2, v0")
    a("v_mul_u32_u24 v7, 3584, v7")
    a("v_and_b32 v8, 3, v0")
    a("v_lshl_add_u32 v7, v8, 4, v7")
    a("v_xor_b32 v8, 32, v7")
    a("v_lshrrev_b32 v9, 1, v0")
    a("v_xor_b32 v10, 4, v9")
    a("v_mul_u32_u24 v9, 3584, v9")
    a("v_mul_u32_u24 v10, 3584, v10")
    a("v_and_b32 v5, 1, v0")
    a("v_lshl_add_u32 v9, v5, 4, v9")
    a("v_lshl_add_u32 v10, v5, 4, v10")
    a("s_lshl_b32 s58, s57, 1")
    a("s_lshl_b32 s3, s49, 6")
    a("s_add_u32 s58, s58, s3")
    a("s_add_u32 s58, s58, 2048")
    a("s_lshl_b32 s59, s57, 2")
    a("s_lshl_b32 s3, s49, 5")
    a("s_add_u32 s59, s59, s3")
    a("s_add_u32 s59, s59, 3072")
    for i in range(4): a("v_mov_b32 v%d, 0" % (40 + i))
    a("v_lshrrev_b32 v5, 5, v31")
    a("v_mul_u32_u24 v5, %d, v5" % KCP)
    a("v_and_b32 v44, 31, v31")
    a("v_min_u32 v44, 23, v44")
    a("v_lshl_add_u32 v5, v44, 4, v5")
    a("v_add_u32 v5, %d, v5" % (KR + 4096))
    a("v_mov_b32 v44, %d" % TB)
    a("s_cmp_ge_u32 s101, 2")
    a("s_cbranch_scc1 %s_nz" % label)
    a.save("nz")
    a("ds_write_b128 v5, v[40:43]")
    a("ds_write_b128 v44, v[40:43]")
    a("ds_write_b128 v44, v[40:43] offset:%d" % TST)
    a.label(label + "_nz")
    a.merge("nz")
    a("s_lshl_b32 s3, s62, 4")
    a("s_lshr_b32 s65, s65, s3")
    a("s_lshl_b32 s65, s65, 16")
    LH = struct.unpack('<f', struct.pack('<I', f2u(LOG2E) & 0xffffff00))[0]
    a("v_mov_b32 v40, %s" % fx(LH))
    a("v_mov_b32 v41, %s" % fx(LOG2E - LH))
    a("v_mul_f32 v40, s65, v40")
    a("v_mul_f32 v41, s65, v41")
    a("v_exp_f32 v40, v40")
    a("v_exp_f32 v41, v41")
    a("v_mul_f32 v40, v40, v41")
    a("v_cvt_pk_bf16_f32 v40, v40, v40")
    a("v_and_b32 v40, 0xffff0000, v40")
    a("s_lshl_b32 s3, s62, 16")
    a("s_lshl_b32 s64, s63, 8")
    a("s_add_u32 s3, s3, s64")
    a("s_add_u32 s3, s3, 32768")
    a("v_lshl_add_u32 v45, v0, 2, s3")
    a("v_mul_f32 v32, v40, v32")
    a("v_mul_f32 v33, v40, v33")
    st.mark(a)
    def put(row, r):
        a("v_cvt_pk_bf16_f32 v%d, v%d, v%d" % (put.t, r, r + 1))
        a("ds_write_b32 v45, v%d offset:%d" % (put.t, row * RS))
        put.t = 46 + (put.t - 46 + 1) % 4
    put.t = 46
    a("s_cmp_ge_u32 s101, 4")
    a("s_cbranch_scc1 %s_role1" % label)
    a.save("role")
    OR = 22
    F = lambda b: 52 + 2 * (b % 8)
    cexp(a, F(1), 32, 33, 8.0, 50)
    a("v_mov_b32 v46, 0x3f80")
    a("ds_write_b32 v45, v46 offset:%d" % (OR * RS))
    put.t = 47
    cmul(a, F(2), F(1), F(1))
    put(OR + 1, F(1))
    cmul(a, F(3), F(2), F(1))
    cmul(a, 70, F(2), F(2))
    put(OR + 2, F(2)); put(OR + 3, F(3)); put(OR + 4, 70)
    for b in range(5, 32):
        src = 70 if b == 8 else F(b - 4)
        cmul(a, F(b), src, 70)
        if b > 5: put(OR + b - 1, F(b - 1))
    put(OR + 31, F(31))
    a("s_branch %s_rolej" % label)
    a.save("rolej")
    a.label(label + "_role1")
    a.restore("role")
    a("v_mul_f32 v34, v40, v34")
    a("v_mul_f32 v35, v40, v35")
    a("v_xor_b32 v33, 0x80000000, v33")
    cexp(a, 52, 32, 33, 1.0, 50)
    cmul(a, 60, 36, 34)
    cexp(a, 58, 32, 33, 256.0, 50)
    a("v_xor_b32 v61, 0x80000000, v61")
    cmul(a, 54, 52, 52)
    G = lambda i: 60 + 2 * i
    cmul(a, G(1), G(0), 52)
    put(0, G(0))
    cmul(a, 56, 54, 54)
    cmul(a, G(2), G(0), 54)
    put(1, G(1))
    cmul(a, G(3), G(1), 54)
    put(2, G(2))
    for i in range(4):
        cmul(a, G(4 + i), G(i), 56)
        put(3 + i, G(3 + i))
    for i in range(4):
        cmul(a, G(8 + i), G(2 * i), 58)
        put(7 + i, G(7 + i))
    cmul(a, G(12), G(8), 58)
    put(11, G(11))
    cmul(a, G(20), G(10), 58)
    put(12, G(12))
    cmul(a, G(13), G(12), 58)
    put(20, G(20))
    cmul(a, G(21), G(20), 58)
    put(13, G(13))
    cmul(a, G(14), G(13), 58)
    put(21, G(21))
    for i in range(15, 19):
        cmul(a, G(i), G(i - 1), 58)
        put(i - 1, G(i - 1))
    put(18, G(18))
    a.label(label + "_rolej")
    a.merge("rolej")
    a("v_and_b32 v46, 15, v0")
    a("v_mul_u32_u24 v47, %d, v46" % RS)
    a("v_lshrrev_b32 v48, 4, v0")
    a("v_lshl_add_u32 v47, v48, 4, v47")
    a("s_lshl_b32 s3, s62, 16")
    a("s_add_u32 s3, s3, 32768")
    a("s_mul_i32 s64, s63, %d" % (16 * RS))
    a("s_add_u32 s64, s64, s3")
    a("v_add_u32 v49, s64, v47")
    a("s_lshr_b32 s67, s101, 2")
    a("s_mul_i32 s64, s67, %d" % (16 * RS))
    a("s_add_u32 s64, s64, s3")
    a("s_add_u32 s64, s64, %d" % (OR * RS))
    a("v_add_u32 v50, s64, v47")
    pk = lambda l: (2 * l[0] | (2 * l[1]) << 16, 2 * l[2] | (2 * l[3]) << 16)
    b0, b1, s0_, s1_ = pk([0, 4, 256, 512]), pk([1536, 516, 2304, 2304]), pk([1, 1, 2, 256]), pk([256, 256, 0, 0])
    a("s_cmp_eq_u32 s63, 0")
    for i in range(2):
        a("s_mov_b32 s%d, 0x%x" % (68 + i, b1[i]))
        a("s_cmov_b32 s%d, 0x%x" % (68 + i, b0[i]))
    a("v_lshlrev_b32 v48, 4, v48")
    a("v_lshrrev_b64 v[52:53], v48, s[68:69]")
    for i in range(2):
        a("s_mov_b32 s%d, 0x%x" % (68 + i, s1_[i]))
        a("s_cmov_b32 s%d, 0x%x" % (68 + i, s0_[i]))
    a("v_lshrrev_b64 v[54:55], v48, s[68:69]")
    a("v_and_b32 v52, 0xffff, v52")
    a("v_and_b32 v54, 0xffff, v54")
    a("s_mul_i32 s3, s62, %d" % TST)
    a("s_lshl_b32 s64, s67, 8")
    a("s_add_u32 s3, s3, s64")
    a("s_add_u32 s3, s3, %d" % (TB + 16))
    a("v_lshl_add_u32 v52, v46, 4, v52")
    a("v_add_u32 v52, s3, v52")
    a("v_add_u32 v53, v52, v54")
    a("v_add_u32 v55, v53, v54")
    a("v_add_u32 v54, v55, v54")
    a.barrier()
    st.mark(a)
    for s in range(8):
        a("ds_read_b128 v[%d:%d], v49 offset:%d" % (64 + 8 * s, 67 + 8 * s, 64 * s))
        a("ds_read_b128 v[%d:%d], v50 offset:%d" % (68 + 8 * s, 71 + 8 * s, 64 * s))
    a("v_and_b32 v32, 255, v31")
    a("v_lshlrev_b32 v60, 4, v32")
    a("v_sub_u32 v32, 4094, v60")
    a("v_cvt_f32_i32 v32, v32")
    for j in range(1, 9):
        a("v_subrev_f32 v%d, %s, v32" % (32 + j, fx(2.0 * j)))
    for j in range(0, 8, 2):
        a("v_cvt_pk_bf16_f32 v%d, v%d, v%d" % (33 + j, 32 + j, 33 + j))
    a("v_cvt_pk_bf16_f32 v40, v40, v40")
    for j in range(0, 8, 2):
        a("v_lshlrev_b32 v%d, 16, v%d" % (32 + j, 33 + j))
        a("v_and_b32 v%d, 0xffff0000, v%d" % (33 + j, 33 + j))
    a("v_and_b32 v40, 0xffff0000, v40")
    a("s_mul_i32 s3, s67, %d" % TST)
    a("s_add_u32 s3, s3, %d" % (TB + 16))
    for j in range(9):
        a("v_cvt_i32_f32 v%d, v%d" % (32 + j, 32 + j))
    for j in range(9):
        a("v_add_u32 v%d, s3, v%d" % (32 + j, 32 + j))
    a("s_mul_i32 s3, s67, %d" % (2 * KCP))
    a("s_add_u32 s3, s3, %d" % KR)
    a("v_add_u32 v60, s3, v60")
    for s in range(8):
        a("v_mfma_f32_16x16x32_bf16 v[56:59], v[%d:%d], v[%d:%d], %s" % (64 + 8 * s, 67 + 8 * s, 68 + 8 * s, 71 + 8 * s, "0" if s == 0 else "v[56:59]"))
    a("v_cvt_pk_bf16_f32 v56, v56, v57")
    a("v_cvt_pk_bf16_f32 v58, v58, v59")
    a("ds_write_b16 v52, v56")
    a("ds_write_b16_d16_hi v53, v56")
    a("ds_write_b16 v55, v58")
    a("ds_write_b16_d16_hi v54, v58")
    a.barrier()
    issue(2); issue(3)
    for j in range(9):
        a("ds_read_u16 v%d, v%d" % (76 + j, 32 + j))
    for i in range(4):
        a("v_lshl_or_b32 v%d, v%d, 16, v%d" % (64 + i, 77 + 2 * i, 76 + 2 * i))
        a("v_lshl_or_b32 v%d, v%d, 16, v%d" % (70 + i, 78 + 2 * i, 77 + 2 * i))
    a("ds_write_b128 v60, v[64:67] offset:%d" % KCP)
    a("ds_write_b128 v60, v[70:73]")
    st.mark(a)
    a("s_and_b32 s61, s101, 3")
    a("s_lshl_b32 s3, s61, 12")
    a("v_add_u32 v11, s3, v2")
    a("v_lshrrev_b32 v5, 5, v0")
    a("v_bfe_u32 v6, v0, 2, 2")
    a("v_lshl_add_u32 v5, v5, 3, v6")
    a("v_and_b32 v6, 1, v0")
    a("v_lshlrev_b32 v20, 4, v6")
    a("v_and_b32 v6, 2, v0")
    a("v_lshl_or_b32 v20, v6, 2, v20")
    a("v_and_b32 v6, 16, v0")
    a("v_lshl_or_b32 v20, v6, 9, v20")
    a("v_lshl_or_b32 v12, v5, 7, v20")
    a("v_and_b32 v21, 24, v0")
    a("v_lshl_or_b32 v12, v21, 2, v12")
    a("s_lshl_b32 s3, s67, 6")
    a("s_or_b32 s3, s3, 0x10000")
    a("v_xor_b32 v12, s3, v12")
    a("v_xor_b32 v13, 32, v12")
    a("v_lshl_or_b32 v14, v5, 6, v20")
    a("v_lshl_or_b32 v14, v6, 1, v14")
    a("s_lshl_b32 s3, s67, 5")
    a("v_xor_b32 v14, s3, v14")
    a("v_add_u32 v15, 0x10000, v14")
    a("v_lshl_or_b32 v16, v5, 5, v20")
    a("v_lshl_or_b32 v16, v6, 3, v16")
    a("s_lshl_b32 s3, s67, 16")
    a("s_add_u32 s3, s3, 32768")
    a("v_add_u32 v16, s3, v16")
    a("v_xor_b32 v17, 128, v16")
    a("v_mov_b32 v1, %s" % fx(C1))
    a("s_mov_b32 s60, %s" % fx(C2))
    a("s_lshl_b32 s56, s48, 2")
    a("s_add_u32 s56, s56, s61")
    a("s_mul_i32 s56, s56, %d" % (112 * 1024))
    XB = 128; WF = 96; ACA = 32; ACB = 64; ACC = 80
    for j in range(8):
        a.wait_tag("P%d" % j)
        a.barrier()
        if j == 0: st.mark(a)
        if j >= 1: issue(j + 3)
        xs = slot_addr(2 * j); ws = slot_addr(2 * j + 1) - 65536
        for ks in range(4):
            r = XB + 4 * (4 * j + ks)
            a("ds_read_b128 v[%d:%d], v11 offset:%d" % (r, r + 3, xs + ks * 1024))
            for t in range(2):
                rr = WF + 4 * (2 * ks + t)
                for jj in range(2):
                    a("ds_read_b64_tr_b16 v[%d:%d], v%d offset:%d" % (rr + 2 * jj, rr + 2 * jj + 1, 12 + t, ws + ks * 2048 + jj * 512))
        for ks in range(4):
            for t in range(2):
                a(mf32(ACA + 16 * t, WF + 4 * (2 * ks + t), XB + 4 * (4 * j + ks), j == 0 and ks == 0))
    st.mark(a)
    srd(a, 4, S_WS, 64 * 112 * 1024, HF)
    a("s_lshl_b32 s3, s49, 2")
    a("s_lshl_b32 s64, s67, 1")
    a("s_add_u32 s3, s3, s64")
    a("s_lshl_b32 s3, s3, 10")
    a("s_add_u32 s64, s56, s3")
    for t in range(2):
        for i in geglu(ACA + 16 * t, ACA + 16 * t + 8, 8, 80, 88 + 4 * t, mimic): a(i)
        a("buffer_store_dwordx4 v[%d:%d], v2, s[4:7], s64 offen offset:%d" % (88 + 4 * t, 91 + 4 * t, 1024 * t))
    for j in (8, 9):
        a.wait_tag("P%d" % j)
        a.barrier()
        for e in range(2):
            so = (j - 8) * 16384
            for ks in range(8):
                rr = WF + 4 * ks
                for jj in range(2):
                    a("ds_read_b64_tr_b16 v[%d:%d], v%d offset:%d" % (rr + 2 * jj, rr + 2 * jj + 1, 14 + e, so + ks * 1024 + jj * 256))
            for ks in range(8):
                k = 16 * (j - 8) + 8 * e + ks
                a(mf32(ACB, WF + 4 * ks, XB + 4 * k, k == 0))
    st.mark(a)
    srd(a, 8, S_WS, 2 << 20, XNT)
    a("v_lshrrev_b32 v18, 1, v31")
    a("v_lshlrev_b32 v19, 13, v18")
    a("v_and_b32 v5, 1, v31")
    a("v_lshl_or_b32 v19, v5, 4, v19")
    a("s_lshl_b32 s3, s50, 5")
    a("v_add_u32 v19, s3, v19")
    a("v_subrev_u32 v20, 0x2000, v19")
    a("buffer_load_dwordx4 v[36:39], v19, s[8:11], 0 offen")
    a("buffer_load_dwordx4 v[32:35], v20, s[8:11], 0 offen")
    a("s_lshl_b32 s3, s49, 1")
    a("s_add_u32 s3, s3, s67")
    a("s_add_u32 s3, s3, 64")
    a("s_lshl_b32 s3, s3, 10")
    a("s_add_u32 s64, s56, s3")
    for i in geglu(ACB, ACB + 8, 8, 48, 56, mimic): a(i)
    a("buffer_store_dwordx4 v[56:59], v2, s[4:7], s64 offen")
    a.wait_tag("P10")
    a.barrier()
    a("s_add_u32 s3, s49, 96")
    a("s_lshl_b32 s3, s3, 10")
    a("s_add_u32 s64, s56, s3")
    a("v_add_u32 v21, s54, v2")
    a("v_xor_b32 v22, 0x2000, v21")
    a("s_cmp_eq_u32 s67, 0")
    a("s_cbranch_scc0 %s_c1" % label)
    a.save("c")
    for p in range(2):
        if p == 1:
            a.label(label + "_c1")
            a.restore("c")
        for half in range(2):
            for ks in range(8):
                rr = WF + 4 * ks
                for jj in range(2):
                    a("ds_read_b64_tr_b16 v[%d:%d], v%d offset:%d" % (rr + 2 * jj, rr + 2 * jj + 1, 16 + jj, (8 * half + ks) * 512))
            for ks in range(8):
                k = 16 * p + 8 * half + ks
                a(mf32(ACC, WF + 4 * ks, XB + 4 * k, half == 0 and ks == 0))
        o = 1 - p
        a("ds_write_b128 v21, v[%d:%d] offset:49152" % (ACC + 4 * o, ACC + 4 * o + 3))
        a("ds_write_b128 v21, v[%d:%d] offset:%d" % (ACC + 8 + 4 * o, ACC + 11 + 4 * o, 49152 + 1024))
        if p == 1:
            for i in range(4):
                a("v_mov_b32 v%d, v%d" % (ACC + i, ACC + 4 + i))
                a("v_mov_b32 v%d, v%d" % (ACC + 8 + i, ACC + 12 + i))
        if p == 0:
            a("s_branch %s_cj" % label)
            a.save("cj")
    a.label(label + "_cj")
    a.merge("cj")
    a.barrier()
    st.mark(a)
    a("ds_read_b128 v[%d:%d], v22 offset:49152" % (ACC + 4, ACC + 7))
    a("ds_read_b128 v[%d:%d], v22 offset:%d" % (ACC + 12, ACC + 15, 49152 + 1024))
    a("v_lshrrev_b32 v19, 4, v18")
    a("v_mul_u32_u24 v19, %d, v19" % URS)
    a("v_and_b32 v20, 15, v18")
    a("v_lshl_add_u32 v19, v20, 4, v19")
    a("v_and_b32 v20, 1, v31")
    a("v_mul_u32_u24 v20, %d, v20" % UCH)
    a("v_add_u32 v19, v19, v20")
    for i in range(6): a("v_mov_b32 v%d, v%d" % (40 + i, 33 + i))
    a("ds_write_b128 v19, v[36:39] offset:%d" % (UB + URS))
    a("ds_write_b128 v19, v[42:45] offset:%d" % (UB + URS + UCP))
    a("ds_write_b128 v19, v[34:37] offset:%d" % (UB + URS + 2 * UCP))
    a("ds_write_b128 v19, v[40:43] offset:%d" % (UB + URS + 3 * UCP))
    for i in range(4): a("v_mov_b32 v%d, 0" % (48 + i))
    a("v_and_b32 v20, 15, v0")
    a("s_mul_i32 s3, s101, %d" % UCP)
    a("v_lshl_add_u32 v20, v20, 4, s3")
    a("ds_write_b128 v20, v[48:51] offset:%d" % UB)
    for i in range(4):
        a("v_add_f32 v%d, v%d, v%d" % (ACC + i, ACC + i, ACC + 4 + i))
        a("v_add_f32 v%d, v%d, v%d" % (ACC + 8 + i, ACC + 8 + i, ACC + 12 + i))
    for i in geglu(ACC, ACC + 8, 4, 52, 56, mimic): a(i)
    a("s_lshl_b32 s3, s67, 3")
    a("s_add_u32 s64, s64, s3")
    a("buffer_store_dwordx2 v[56:57], v2, s[4:7], s64 offen")
    a("s_lshr_b32 s61, s101, 1")
    a("v_and_b32 v5, 1, v0")
    a("v_mul_u32_u24 v11, %d, v5" % KCP)
    a("v_bfe_u32 v5, v0, 1, 4")
    a("v_lshrrev_b32 v6, 5, v0")
    a("v_sub_u32 v5, v6, v5")
    a("v_lshl_add_u32 v11, v5, 4, v11")
    a("s_mul_i32 s3, s62, %d" % (2 * KCP))
    a("s_lshl_b32 s64, s61, 9")
    a("s_add_u32 s3, s3, s64")
    a("s_add_u32 s3, s3, %d" % (KR + 240))
    a("v_add_u32 v11, s3, v11")
    a("v_and_b32 v5, 3, v0")
    a("v_mul_u32_u24 v12, %d, v5" % UCP)
    a("v_lshl_add_u32 v12, v6, 4, v12")
    a("s_mul_i32 s3, s62, %d" % UCH)
    a("v_add_u32 v12, s3, v12")
    a("v_bfe_u32 v13, v0, 2, 3")
    a("s_lshl_b32 s3, s61, 1")
    a("v_add_u32 v14, s3, v13")
    a("v_mad_u32_u24 v15, v14, %s, v12" % "s64" if False else "v_mul_u32_u24 v15, %d, v14" % URS)
    a("v_add_u32 v15, v15, v12")
    a("v_max_u32 v16, 6, v14")
    a("v_subrev_u32 v16, 6, v16")
    a("v_mul_u32_u24 v16, %d, v16" % URS)
    a("v_add_u32 v16, v16, v12")
    a("v_max_u32 v17, 5, v14")
    a("v_subrev_u32 v17, 5, v17")
    a("v_mul_u32_u24 v17, %d, v17" % URS)
    a("v_add_u32 v17, v17, v12")
    a("v_mul_u32_u24 v18, %d, v13" % PBS)
    a("v_lshl_add_u32 v18, v6, 6, v18")
    a("v_lshlrev_b32 v5, 3, v5")
    a("v_sub_u32 v18, v18, v5")
    a("s_mul_i32 s3, s101, %d" % (16 * PBS))
    a("s_add_u32 s3, s3, %d" % (PB + 24))
    a("v_add_u32 v18, s3, v18")
    a.barrier()
    st.mark(a)
    T0 = 32; T1 = 48
    def rd(s):
        r = 128 + 16 * (s % 6)
        a("ds_read_b128 v[%d:%d], v11 offset:%d" % (r, r + 3, 32 * s))
        a("ds_read_b128 v[%d:%d], v%d offset:%d" % (r + 4, r + 7, 16 + (s >> 3), UB + 32 * (s & 7)))
        a("ds_read_b128 v[%d:%d], v11 offset:%d" % (r + 8, r + 11, 2048 + 32 * s))
        a("ds_read_b128 v[%d:%d], v15 offset:%d" % (r + 12, r + 15, UB + 640 + URS * (s >> 3) + 32 * (s & 7)))
    rd(0); rd(1); rd(2)
    for s in range(16):
        r = 128 + 16 * (s % 6)
        a(mf32(T1, r, r + 4, s == 0))
        a(mf32(T0, r + 8, r + 4, s == 0))
        if s + 3 < 16: rd(s + 3)
        a(mf32(T1, r + 8, r + 12, False))
    for t in range(2):
        for g in range(4):
            for rr in range(2):
                r = T0 + 16 * t + 4 * g + 2 * rr
                a("ds_write_b64 v18, v[%d:%d] offset:%d" % (r, r + 1, t * 8 * PBS + 128 * g + 32 * rr))
    a("v_bfe_u32 v5, v31, 4, 4")
    a("v_and_b32 v6, 15, v31")
    a("v_mul_u32_u24 v19, %d, v5" % PBS)
    a("v_lshl_add_u32 v19, v6, 5, v19")
    a("s_mul_i32 s3, s67, %d" % (16 * PBS))
    a("s_add_u32 s3, s3, %d" % PB)
    a("v_add_u32 v19, s3, v19")
    a("v_mul_u32_u24 v20, %d, v5" % URS)
    a("v_lshl_add_u32 v20, v6, 4, v20")
    a("s_mul_i32 s3, s67, %d" % UCH)
    a("v_add_u32 v20, s3, v20")
    a("s_lshl_b32 s3, s67, 4")
    a("s_lshr_b32 s66, s66, s3")
    a("s_lshl_b32 s66, s66, 16")
    srd(a, 8, S_WS, 2 << 20, PT)
    a("s_lshl_b32 s64, s50, 13")
    a("v_lshlrev_b32 v21, 4, v31")
    a("ds_read_b128 v[96:99], v20 offset:%d" % (UB + URS))
    a.barrier()
    st.mark(a)
    for q in range(4):
        for hh in range(2):
            r = 64 + 8 * q + 4 * hh
            a("ds_read_b128 v[%d:%d], v19 offset:%d" % (r, r + 3, q * 32 * PBS + 16 * hh))
    for j in range(4):
        a("v_lshlrev_b32 v%d, 16, v%d" % (100 + 2 * j, 96 + j))
        a("v_and_b32 v%d, 0xffff0000, v%d" % (101 + 2 * j, 96 + j))
    for j in range(8): a("v_mul_f32 v%d, s66, v%d" % (100 + j, 100 + j))
    for j in range(4): a("v_cvt_pk_bf16_f32 v%d, v%d, v%d" % (96 + j, 100 + 2 * j, 101 + 2 * j))
    for j in range(4):
        a("v_lshlrev_b32 v%d, 16, v%d" % (100 + 2 * j, 96 + j))
        a("v_and_b32 v%d, 0xffff0000, v%d" % (101 + 2 * j, 96 + j))
    for j in range(8):
        a("v_add_f32 v%d, v%d, v%d" % (64 + j, 64 + j, 72 + j))
        a("v_add_f32 v%d, v%d, v%d" % (80 + j, 80 + j, 88 + j))
    for j in range(8): a("v_add_f32 v%d, v%d, v%d" % (64 + j, 64 + j, 80 + j))
    for j in range(4): a("v_cvt_pk_bf16_f32 v%d, v%d, v%d" % (96 + j, 64 + 2 * j, 65 + 2 * j))
    for j in range(4):
        a("v_lshlrev_b32 v%d, 16, v%d" % (64 + 2 * j, 96 + j))
        a("v_and_b32 v%d, 0xffff0000, v%d" % (65 + 2 * j, 96 + j))
    for j in range(8): a("v_add_f32 v%d, v%d, v%d" % (64 + j, 64 + j, 100 + j))
    for j in range(4): a("v_cvt_pk_bf16_f32 v%d, v%d, v%d" % (96 + j, 64 + 2 * j, 65 + 2 * j))
    a("buffer_store_dwordx4 v[96:99], v21, s[8:11], s64 offen")
    st.mark(a)
    st.dump(a, 30)
    a.label(label + "_end")
    a("s_endpgm")
    a.label(label + "_fin")
```

```python
from common import *

def gen_k2(a, label, stamps=False, pf=True):
    st = Stamps(stamps, 2)
    begin(a, label)
    a("s_load_dwordx16 s[16:31], s[0:1], 0")
    a("s_load_dwordx16 s[32:47], s[0:1], 64")
    st.mark(a)
    a("s_cmp_ge_u32 s2, 256")
    a("s_cbranch_scc1 %s_end" % label)
    if pf:
        code_prefetch(a, label, 250, 0, 251)
        a("s_lshr_b32 s3, s2, 3")
        a("v_lshl_add_u32 v250, v0, 5, s3")
        a("v_lshlrev_b32 v250, 7, v250")
        srd(a, 4, S_WD, 1792 * 1024)
        a("s_and_b32 s3, s2, 7")
        a("s_mul_i32 s3, s3, %d" % (8 * 112 * 1024))
        a("s_add_u32 s3, s3, %d" % HF)
        a("s_add_u32 s8, s46, s3")
        a("s_addc_u32 s9, s47, 0")
        a("s_mov_b32 s10, %d" % (8 * 112 * 1024))
        a("s_mov_b32 s11, 0x00020000")
        a("buffer_load_dword v252, v250, s[4:7], 0 offen")
        a("buffer_load_dword v253, v250, s[8:11], 0 offen")
    a("v_lshrrev_b32 v1, 6, v0")
    a("v_and_b32 v0, 63, v0")
    a("v_readfirstlane_b32 s101, v1")
    a("s_and_b32 s48, s2, 7")
    a("s_lshl_b32 s48, s48, 2")
    a("s_bfe_u32 s3, s2, 0x20003")
    a("s_add_u32 s48, s48, s3")
    a("s_lshr_b32 s49, s2, 5")
    a("s_and_b32 s50, s101, 1")
    a("s_lshr_b32 s51, s101, 1")
    a("v_lshlrev_b32 v2, 4, v0")
    a("v_lshrrev_b32 v3, 3, v0")
    a("v_lshlrev_b32 v3, 10, v3")
    a("v_and_b32 v4, 7, v0")
    a("v_lshlrev_b32 v4, 4, v4")
    a("v_and_b32 v5, 16, v0")
    a("v_lshlrev_b32 v5, 2, v5")
    a("v_xor_b32 v5, v5, v4")
    a("v_or_b32 v3, v3, v5")
    a("s_mul_i32 s52, s51, 448")
    a("s_lshl_b32 s3, s50, 5")
    a("s_add_u32 s52, s52, s3")
    a("s_lshl_b32 s52, s52, 10")
    a("s_lshl_b32 s3, s49, 7")
    a("s_add_u32 s52, s52, s3")
    a("s_lshl_b32 s53, s48, 1")
    a("s_add_u32 s53, s53, s50")
    a("s_mul_i32 s53, s53, 112")
    a("s_mul_i32 s3, s51, 28")
    a("s_add_u32 s53, s53, s3")
    a("s_lshl_b32 s53, s53, 10")
    a("s_lshl_b32 s54, s51, 15")
    a("s_lshl_b32 s3, s50, 12")
    a("s_add_u32 s54, s54, s3")
    srd(a, 4, S_WD, 1792 * 1024)
    srd(a, 8, S_WS, 64 * 112 * 1024, HF)
    HB = 128
    def issue(u):
        for i in range(4):
            a("s_add_u32 m0, s54, %d" % ((u & 3) * 8192 + i * 1024))
            a("s_add_u32 s55, s52, %d" % ((64 * u + 8 * i) * 1024))
            a("buffer_load_dwordx4 v3, s[4:7], s55 offen lds", tag="W%d" % u)
        a("s_add_u32 s55, s53, %d" % (u * 4096))
        for i in range(4):
            r = HB + 4 * (4 * u + i)
            a("buffer_load_dwordx4 v[%d:%d], v2, s[8:11], s55 offen offset:%d" % (r, r + 3, i * 1024))
    for u in range(4): issue(u)
    srd(a, 12, S_WS, 2 << 20, PT)
    a("v_lshrrev_b32 v6, 3, v0")
    a("v_lshlrev_b32 v6, 12, v6")
    a("v_or_b32 v6, v6, v4")
    a("s_lshl_b32 s55, s49, 3")
    a("s_add_u32 s55, s55, s101")
    a("s_lshl_b32 s55, s55, 15")
    a("s_lshl_b32 s3, s48, 7")
    a("s_add_u32 s55, s55, s3")
    a("s_lshl_b32 s3, s101, 10")
    a("s_add_u32 m0, s3, 131072")
    a("buffer_load_dwordx4 v6, s[12:15], s55 offen lds", tag="PT")
    a("v_and_b32 v7, 31, v0")
    a("v_lshlrev_b32 v7, 10, v7")
    a("v_lshrrev_b32 v8, 5, v0")
    a("v_lshl_add_u32 v7, v8, 4, v7")
    a("s_lshl_b32 s56, s48, 1")
    a("s_add_u32 s56, s56, s50")
    a("s_lshl_b32 s56, s56, 15")
    a("s_lshl_b32 s3, s49, 7")
    a("s_add_u32 s56, s56, s3")
    a("s_lshl_b32 s3, s51, 5")
    a("s_add_u32 s56, s56, s3")
    srd(a, 12, S_X, 2 << 20)
    a("buffer_load_dwordx4 v[240:243], v7, s[12:15], s56 offen")
    srd(a, 12, S_OUT, 2 << 20)
    a("v_lshrrev_b32 v9, 5, v0")
    a("v_bfe_u32 v10, v0, 2, 2")
    a("v_lshl_add_u32 v9, v9, 3, v10")
    a("v_lshlrev_b32 v9, 7, v9")
    a("v_and_b32 v11, 16, v0")
    a("v_lshl_or_b32 v12, v11, 1, v9")
    a("v_and_b32 v11, 3, v0")
    a("v_lshl_or_b32 v13, v11, 3, v12")
    a("v_and_b32 v11, 1, v0")
    a("v_lshl_or_b32 v12, v11, 4, v12")
    a("v_and_b32 v11, 2, v0")
    a("v_lshl_or_b32 v12, v11, 2, v12")
    a("v_and_b32 v11, 8, v0")
    a("v_lshl_or_b32 v12, v11, 3, v12")
    a("s_lshl_b32 s3, s51, 15")
    a("v_add_u32 v10, s3, v12")
    a("v_xor_b32 v11, 64, v10")
    a("s_lshl_b32 s3, s51, 11")
    a("s_lshl_b32 s55, s50, 6")
    a("s_add_u32 s3, s3, s55")
    a("s_add_u32 s3, s3, 131072")
    a("v_add_u32 v13, s3, v13")
    a("s_lshl_b32 s3, s51, 15")
    a("s_lshl_b32 s55, s50, 13")
    a("s_add_u32 s3, s3, s55")
    a("v_add_u32 v14, s3, v2")
    a("s_lshl_b32 s3, s51, 11")
    a("s_add_u32 s3, s3, s55")
    a("v_add_u32 v15, s3, v2")
    a("v_add_u32 v16, 0x10000, v15")
    st.mark(a)
    ACC = 32
    AF = 64
    for u in range(7):
        a.wait_tag("W%d" % u)
        a.barrier()
        if u == 0: st.mark(a)
        if 1 <= u <= 3: issue(u + 3)
        for s in range(4):
            for t in range(2):
                r = AF + 4 * (2 * s + t)
                for jj in range(2):
                    a("ds_read_b64_tr_b16 v[%d:%d], v%d offset:%d" % (r + 2 * jj, r + 2 * jj + 1, 10 + t, (u & 3) * 8192 + s * 2048 + jj * 512))
        for s in range(4):
            for t in range(2):
                r = AF + 4 * (2 * s + t); h = HB + 4 * (4 * u + s); c = ACC + 16 * t
                a("v_mfma_f32_32x32x16_bf16 v[%d:%d], v[%d:%d], v[%d:%d], %s" % (c, c + 15, r, r + 3, h, h + 3, "0" if (u == 0 and s == 0) else "v[%d:%d]" % (c, c + 15)))
    st.mark(a)
    for d in range(4):
        for q in range(2):
            r = ACC + 8 * d + 4 * q
            a("ds_write_b128 v14, v[%d:%d] offset:%d" % (r, r + 3, d * 2048 + q * 1024))
    a.wait_tag("PT")
    a.barrier()
    for s in range(4):
        for q in range(2):
            r = 64 + 8 * s + 4 * q
            a("ds_read_b128 v[%d:%d], v%d offset:%d" % (r, r + 3, 15 + (s >> 1), (s & 1) * 32768 + q * 1024))
    a("ds_read_b64_tr_b16 v[96:97], v13")
    a("ds_read_b64_tr_b16 v[98:99], v13 offset:512")
    for j in range(8):
        a("v_add_f32 v%d, v%d, v%d" % (64 + j, 64 + j, 72 + j))
        a("v_add_f32 v%d, v%d, v%d" % (80 + j, 80 + j, 88 + j))
    for j in range(8):
        a("v_add_f32 v%d, v%d, v%d" % (64 + j, 64 + j, 80 + j))
    for j in range(4):
        a("v_cvt_pk_bf16_f32 v%d, v%d, v%d" % (72 + j, 64 + 2 * j, 65 + 2 * j))
        a("v_lshlrev_b32 v%d, 16, v%d" % (80 + 2 * j, 240 + j))
        a("v_and_b32 v%d, 0xffff0000, v%d" % (81 + 2 * j, 240 + j))
        a("v_lshlrev_b32 v%d, 16, v%d" % (88 + 2 * j, 96 + j))
        a("v_and_b32 v%d, 0xffff0000, v%d" % (89 + 2 * j, 96 + j))
    for j in range(8):
        a("v_add_f32 v%d, v%d, v%d" % (80 + j, 80 + j, 88 + j))
    for j in range(4):
        a("v_cvt_pk_bf16_f32 v%d, v%d, v%d" % (76 + j, 80 + 2 * j, 81 + 2 * j))
    for j in range(4):
        a("v_lshlrev_b32 v%d, 16, v%d" % (80 + 2 * j, 72 + j))
        a("v_and_b32 v%d, 0xffff0000, v%d" % (81 + 2 * j, 72 + j))
        a("v_lshlrev_b32 v%d, 16, v%d" % (88 + 2 * j, 76 + j))
        a("v_and_b32 v%d, 0xffff0000, v%d" % (89 + 2 * j, 76 + j))
    for j in range(8):
        a("v_add_f32 v%d, v%d, v%d" % (80 + j, 80 + j, 88 + j))
    for j in range(4):
        a("v_cvt_pk_bf16_f32 v%d, v%d, v%d" % (72 + j, 80 + 2 * j, 81 + 2 * j))
    a("buffer_store_dwordx4 v[72:75], v7, s[12:15], s56 offen")
    st.mark(a)
    st.dump(a, 30)
    a.label(label + "_end")
    a("s_endpgm")
    a.label(label + "_fin")
```

```python
import re

TRANS = ("v_exp_f32", "v_log_f32", "v_rcp_f32", "v_rsq_f32", "v_sqrt_f32", "v_sin_f32", "v_cos_f32",
         "v_rcp_iflag_f32", "v_exp_f16", "v_rcp_f16")

def regs_of(tok):
    tok = tok.strip()
    tok = tok.lstrip('-')
    if tok.startswith('abs(') and tok.endswith(')'):
        tok = tok[4:-1]
    if tok.startswith('|') and tok.endswith('|'):
        tok = tok[1:-1]
    m = re.fullmatch(r'([vsa])\[(\d+):(\d+)\]', tok)
    if m:
        return {(m.group(1), i) for i in range(int(m.group(2)), int(m.group(3)) + 1)}
    m = re.fullmatch(r'([vsa])(\d+)', tok)
    if m:
        return {(m.group(1), int(m.group(2)))}
    if tok in ('vcc', 'vcc_lo', 'vcc_hi'):
        return {('s', 'vcc')}
    if tok in ('exec', 'exec_lo', 'exec_hi'):
        return {('s', 'exec')}
    if tok == 'm0':
        return {('s', 'm0')}
    return set()

class Ins:
    __slots__ = ('text', 'op', 'ops', 'mods', 'defs', 'uses', 'cls', 'tag', 'mf_c', 'mf_ab', 'passes', 'sdata', 'dpp')
    def __init__(self, text, tag=None):
        self.text = text
        self.tag = tag
        t = text.split(';')[0].strip()
        parts = t.split(None, 1)
        self.op = parts[0]
        rest = parts[1] if len(parts) > 1 else ''
        ops = []; depth = 0; cur = ''
        for ch in rest:
            if ch in '[(': depth += 1
            if ch in '])': depth -= 1
            if ch == ',' and depth == 0:
                ops.append(cur.strip()); cur = ''
            else:
                cur += ch
        mods = ''
        if cur.strip():
            last = cur.strip().split(None, 1)
            ops.append(last[0])
            mods = last[1] if len(last) > 1 else ''
        self.ops = ops; self.mods = mods
        self.classify()

    def classify(self):
        op = self.op; ops = self.ops
        R = [regs_of(o) for o in ops]
        U = lambda lst: set().union(*lst) if lst else set()
        self.defs = set(); self.uses = set(); self.mf_c = set(); self.mf_ab = set(); self.passes = 0
        self.sdata = set(); self.dpp = False
        base = re.sub(r'_(e32|e64|dpp|sdwa)$', '', op)
        if op.startswith('v_mfma'):
            self.cls = 'mfma'
            self.defs = R[0]; self.mf_ab = R[1] | R[2]; self.mf_c = R[3]; self.uses = self.mf_ab | self.mf_c
            self.passes = 8 if '32x32x16' in op else 4 if '16x16x32' in op else None
            assert self.passes, op
        elif op.startswith('v_'):
            self.cls = 'trans' if base in TRANS else 'valu'
            self.dpp = bool(re.search(r'quad_perm|row_|wave_|bank_mask', self.mods))
            if base.startswith('v_cmpx'):
                self.defs = R[0] | {('s', 'exec')}; self.uses = U(R[1:])
            elif base.startswith('v_cmp'):
                self.defs = R[0]; self.uses = U(R[1:])
            elif base in ('v_add_co_u32', 'v_sub_co_u32', 'v_subrev_co_u32', 'v_addc_co_u32', 'v_subb_co_u32',
                          'v_mad_u64_u32', 'v_div_scale_f32'):
                self.defs = R[0] | R[1]; self.uses = U(R[2:])
            elif base in ('v_permlane32_swap_b32', 'v_permlane16_swap_b32', 'v_swap_b32'):
                self.defs = R[0] | R[1]; self.uses = R[0] | R[1]
            elif base == 'v_nop':
                pass
            else:
                self.defs = R[0]; self.uses = U(R[1:])
                if base in ('v_fmac_f32', 'v_dot2c_f32_bf16', 'v_pk_fmac_f16', 'v_writelane_b32', 'v_dot2c_f32_f16') or self.dpp \
                        or 'dst_unused:UNUSED_PRESERVE' in self.mods or ('op_sel' in self.mods and not base.startswith('v_pk_')):
                    self.uses |= R[0]
        elif op.startswith('ds_'):
            self.cls = 'ds'
            if op.startswith(('ds_read', 'ds_bpermute', 'ds_permute', 'ds_swizzle')) or '_rtn' in op:
                self.defs = R[0]; self.uses = U(R[1:])
                if 'd16' in op: self.uses |= R[0]
            else:
                self.uses = U(R)
        elif op.startswith('buffer_') or op.startswith('global_'):
            self.cls = 'vmem'
            lds = bool(re.search(r'\blds\b', self.mods)) or op.startswith('global_load_lds')
            if op in ('buffer_inv', 'buffer_wbl2'):
                pass
            elif lds:
                self.uses = U(R) | {('s', 'm0')}
                self.cls = 'dma'
            elif '_load' in op:
                self.defs = R[0]; self.uses = U(R[1:])
                if 'd16' in op: self.uses |= R[0]
            elif '_store' in op:
                self.uses = U(R)
                d = R[0] if op.startswith('buffer_') else R[1]
                if 'x4' in op or 'x3' in op: self.sdata = d
            elif 'atomic' in op:
                self.uses = U(R)
                if re.search(r'\bsc0\b', self.mods): self.defs = R[0]
            else:
                raise ValueError(op)
        elif op.startswith('s_load') or op.startswith('s_memtime') or op.startswith('s_memrealtime') or op.startswith('s_buffer_load'):
            self.cls = 'smem'
            self.defs = R[0]; self.uses = U(R[1:])
        elif op.startswith('s_'):
            self.cls = 'salu'
            if op.startswith(('s_cmp', 's_cbranch', 's_branch', 's_barrier', 's_waitcnt', 's_nop', 's_endpgm', 's_setprio', 's_sleep', 's_bitcmp', 's_setreg')):
                self.uses = U(R)
            elif 'saveexec' in op:
                self.defs = R[0] | {('s', 'exec')}; self.uses = U(R[1:]) | {('s', 'exec')}
            else:
                self.defs = R[0]; self.uses = U(R[1:])
                if op in ('s_addk_i32', 's_mulk_i32'): self.uses |= R[0]
        else:
            raise ValueError("unknown op " + self.text)

class State:
    def __init__(self):
        self.vm = {}
        self.lg = {}
        self.hist = []
    def copy(self):
        s = State()
        s.vm = {k: list(v) for k, v in self.vm.items()}
        s.lg = {k: list(v) for k, v in self.lg.items()}
        s.hist = [list(h) for h in self.hist]
        return s
    def merge(self, o):
        for a, b in ((self.vm, o.vm), (self.lg, o.lg)):
            for k, v in b.items():
                if k in a: a[k][1] = min(a[k][1], v[1])
                else: a[k] = list(v)
        self.hist = self.hist + [list(h) for h in o.hist]

class Asm:
    def __init__(self):
        self.out = []
        self.st = State()
        self.nid = 0
        self.saved = {}
        self.nops = 0
        self.cnt = {}

    def raw(self, s):
        self.out.append(s)
    def comment(self, s):
        self.out.append('    ; ' + s)
    def label(self, name):
        self.out.append(name + ':')

    def _adv(self, n):
        for h in self.st.hist: h[1] += n
        self.st.hist = [h for h in self.st.hist if h[1] < 24]

    def _wait(self, vm=None, lg=None):
        parts = []
        if vm is not None:
            vm = min(vm, 63); parts.append('vmcnt(%d)' % vm)
            self.st.vm = {k: v for k, v in self.st.vm.items() if v[1] < vm}
        if lg is not None:
            lg = min(lg, 15); parts.append('lgkmcnt(%d)' % lg)
            self.st.lg = {k: v for k, v in self.st.lg.items() if v[1] < lg}
        if parts:
            self.out.append('    s_waitcnt ' + ' '.join(parts))
            self._adv(1)

    def wait_tag(self, *tags, lg0=False):
        n = None
        for v in self.st.vm.values():
            if v[2] in tags: n = v[1] if n is None else min(n, v[1])
        l = 0 if (lg0 and self.st.lg) else None
        self._wait(vm=n, lg=l)
    def wait_regs(self, lo, hi):
        t = {('v', i) for i in range(lo, hi + 1)}
        vmn = None; lgn = None
        for v in self.st.vm.values():
            if v[0] & t: vmn = v[1] if vmn is None else min(vmn, v[1])
        smem_out = any(v[3] for v in self.st.lg.values())
        for v in self.st.lg.values():
            if v[0] & t:
                n = 0 if smem_out else v[1]
                lgn = n if lgn is None else min(lgn, n)
        self._wait(vm=vmn, lg=lgn)
    def E(self, items):
        for it in items:
            if callable(it): it(self)
            elif isinstance(it, tuple): self(it[0], tag=it[1])
            else: self(it)
    def wait_vm0(self):
        self._wait(vm=0)
    def wait_lg0(self, force=False):
        if self.st.lg or force: self._wait(lg=0)
    def wait_all(self):
        self._wait(vm=0, lg=0)

    def _need(self, ins):
        need = 0
        isvalu = ins.cls in ('valu', 'trans')
        for p, d in self.st.hist:
            req = 0
            pv = p.cls in ('valu', 'trans')
            vdef = {r for r in p.defs if r[0] in 'va'}
            sdef = {r for r in p.defs if r[0] == 's'}
            if pv:
                if ins.cls == 'mfma' and (vdef & ins.uses): req = max(req, 2)
                if ins.cls == 'mfma' and ('s', 'exec') in sdef: req = max(req, 4)
                if p.cls == 'trans' and isvalu and (vdef & ins.uses): req = max(req, 1)
                if ins.cls in ('vmem', 'dma') and (sdef & ins.uses): req = max(req, 5)
                if isvalu and (sdef & ins.uses): req = max(req, 4 if ins.op.startswith(('v_readlane', 'v_writelane')) else 2)
                if ins.cls in ('salu', 'smem') and (sdef & ins.uses): req = max(req, 1)
                if ins.op.startswith(('v_readlane', 'v_readfirstlane')) and (vdef & ins.uses): req = max(req, 1)
                if ins.op.startswith(('v_readlane', 'v_readfirstlane', 'v_writelane', 'v_permlane')) and ('s', 'exec') in sdef: req = max(req, 4)
                if isvalu and ins.dpp and (vdef & ins.uses): req = max(req, 2)
                if isvalu and ins.dpp and ('s', 'exec') in sdef: req = max(req, 5)
                if ins.op.startswith('v_permlane') and (vdef & ins.uses): req = max(req, 2)
                if isvalu and ('sdwa' in p.op or 'dst_sel' in p.mods or ('op_sel' in p.mods and not p.op.startswith('v_pk_'))) and (vdef & (ins.uses | ins.defs)): req = max(req, 1)
                if p.op.startswith('v_dot') and (vdef & (ins.uses | ins.defs)) and not (ins.op == p.op and ins.defs == p.defs and not (vdef & (regs_of(ins.ops[1]) | regs_of(ins.ops[2])))): req = max(req, 3)
            if p.cls == 'mfma':
                big = {8: 12, 4: 8}[p.passes]
                if ins.cls == 'mfma':
                    if p.defs & ins.mf_ab: req = max(req, big)
                    if p.defs & ins.mf_c and not (p.defs == ins.mf_c and p.passes == ins.passes): req = max(req, big - 2)
                    if (p.defs & ins.defs) and not (p.defs == ins.defs and p.passes == ins.passes and ins.mf_c == ins.defs): req = max(req, big)
                elif ins.cls in ('valu', 'trans', 'ds', 'vmem', 'dma'):
                    if p.defs & (ins.uses | ins.defs): req = max(req, big)
                    if (p.mf_c & ins.defs): req = max(req, p.passes - 1)
            if p.sdata and (p.sdata & ins.defs): req = max(req, 2)
            if p.cls == 'salu' and ('s', 'm0') in p.defs and ins.cls == 'dma': req = max(req, 1)
            if req - d > need: need = req - d
        return need

    def __call__(self, text, tag=None):
        for line in text.strip().split('\n'):
            line = line.strip()
            if not line or line.startswith(';'): continue
            self.emit(line, tag)

    def emit(self, text, tag=None):
        ins = Ins(text, tag)
        touch = ins.uses | ins.defs
        vmn = None
        for v in self.st.vm.values():
            if v[0] & touch: vmn = v[1] if vmn is None else min(vmn, v[1])
        lgn = None
        smem_out = any(v[3] for v in self.st.lg.values())
        for v in self.st.lg.values():
            if v[0] & touch:
                n = 0 if smem_out else v[1]
                lgn = n if lgn is None else min(lgn, n)
        self._wait(vm=vmn, lg=lgn)
        need = self._need(ins)
        while need > 0:
            k = min(need, 16)
            self.out.append('    s_nop %d' % (k - 1)); self._adv(k); need -= k; self.nops += 1
        self.out.append('    ' + text)
        self.cnt[ins.cls] = self.cnt.get(ins.cls, 0) + 1
        if ins.op == 's_nop':
            self._adv(int(ins.ops[0], 0) + 1)
        else:
            self._adv(1)
        if ins.op == 's_waitcnt':
            raise ValueError("use wait helpers")
        self.st.hist.append([ins, 0])
        self.nid += 1
        if ins.cls in ('vmem', 'dma'):
            for v in self.st.vm.values(): v[1] += 1
            self.st.vm[self.nid] = [set(ins.defs), 0, tag]
        elif ins.cls in ('ds', 'smem'):
            for v in self.st.lg.values(): v[1] += 1
            self.st.lg[self.nid] = [set(ins.defs), 0, tag, ins.cls == 'smem']

    def save(self, name): self.saved[name] = self.st.copy()
    def restore(self, name): self.st = self.saved[name].copy()
    def merge(self, name): self.st.merge(self.saved[name])
    def reset(self): self.st = State()

    def barrier(self, lg0=True):
        if lg0: self.wait_lg0()
        self('s_barrier')

    def text(self):
        return '\n'.join(self.out) + '\n'

def interleave(main, fill, start=0, per=None):
    idx = [i for i, m in enumerate(main) if (m[0] if isinstance(m, tuple) else m if isinstance(m, str) else '').lstrip().startswith('v_mfma')]
    idx = idx[start:]
    out = []; n = len(idx); pos = {}
    for j, i in enumerate(idx):
        lo = len(fill) * j // n; hi = len(fill) * (j + 1) // n
        pos[i] = fill[lo:hi]
    for i, m in enumerate(main):
        out.append(m)
        out.extend(pos.get(i, []))
    return out
```

```python
import sys, math
from common import *

ST = 0
CS = 64 << 10
FL = 256 << 10
FH = FL + 4096
FP = FL + 16384
EP = 512 << 10
WSZ = 17 << 20
ODD = 49152
R2 = 98304
RS = 528; SCH = 54 * RS
LNB = R2; LNS = 1088; CSB = R2 + 8 * LNS
KR = R2; KCP = 4480
UB = KR + 4 * KCP; UCP = 5648; UCH = 4 * UCP; URS = 320
TB = UB; TST = 5136
PB = R2
PTB = 131072
LDS = 163840
LOG2E = math.log2(math.e)
C1 = -2.0 * math.sqrt(2.0 / math.pi) * LOG2E
C2 = C1 * 0.044715
SPIN = 20000
MT, NT, CP, M2, N2 = 48, 49, 50, 51, 52
SX, SWG, SWU, SWS, SWD = 4, 8, 12, 56, 60
NONCE, WV = 100, 101
XB = 128; WF = 96; ACA = 32; ACB = 64; ACC = 80
WSL = [2, 5, 3, 1, 4, 0]

def slot(j, e): return (j % 3) * 16384 + e * ODD
def mf32(c, A, B, first=False):
    return "v_mfma_f32_32x32x16_bf16 v[%d:%d], v[%d:%d], v[%d:%d], %s" % (c, c + 15, A, A + 3, B, B + 3, "0" if first else "v[%d:%d]" % (c, c + 15))
def cost(it):
    if callable(it): return 0
    c = 0
    for s in (it[0] if isinstance(it, tuple) else it).split('\n'):
        s = s.strip()
        if s.startswith(('v_exp', 'v_rcp', 'v_sin', 'v_cos', 'v_sqrt')): c += 2
        elif s.startswith('s_'): c += 0.3
        elif s.startswith('buffer_'): c += 3
        else: c += 1
    return c
def spread(pos, items, lo, hi):
    tot = sum(cost(i) for i in items) or 1; acc = 0.0
    for it in items:
        k = lo + min(hi - lo - 1, int(acc / tot * (hi - lo)))
        pos[k].append(it); acc += cost(it)

PK = True
def cmul(d, x, y):
    if PK:
        return ["v_pk_mul_f32 v[%d:%d], v[%d:%d], v[%d:%d] op_sel:[0,0] op_sel_hi:[1,0]" % (d, d + 1, x, x + 1, y, y + 1),
                "v_pk_fma_f32 v[%d:%d], v[%d:%d], v[%d:%d], v[%d:%d] op_sel:[1,1,0] op_sel_hi:[0,1,1] neg_lo:[1,0,0]" % (d, d + 1, x, x + 1, y, y + 1, d, d + 1)]
    return ["v_mul_f32 v%d, v%d, v%d" % (d, x, y), "v_mul_f32 v%d, v%d, v%d" % (d + 1, x + 1, y),
            "v_fma_f32 v%d, -v%d, v%d, v%d" % (d, x + 1, y + 1, d), "v_fmac_f32 v%d, v%d, v%d" % (d + 1, x, y + 1)]
def cexp(d, zr, zi, L, t):
    return ["v_mul_f32 v%d, %s, v%d" % (t, fx(L * LOG2E), zr), "v_mul_f32 v%d, %s, v%d" % (t + 1, fx(L / (2 * math.pi)), zi),
            "v_exp_f32 v%d, v%d" % (t, t), "v_fract_f32 v%d, v%d" % (t + 1, t + 1),
            "v_cos_f32 v%d, v%d" % (d, t + 1), "v_sin_f32 v%d, v%d" % (d + 1, t + 1),
            "v_mul_f32 v%d, v%d, v%d" % (d, d, t), "v_mul_f32 v%d, v%d, v%d" % (d + 1, d + 1, t)]
def geglu(G, U, n, T, O):
    L = []
    for b in range(0, n, 4):
        J = range(4)
        L += ["v_mul_f32 v%d, v%d, v%d" % (T + j, G + b + j, G + b + j) for j in J]
        L += ["v_fma_f32 v%d, v%d, v29, v28" % (T + j, T + j) for j in J]
        L += ["v_mul_f32 v%d, v%d, v%d" % (T + j, T + j, G + b + j) for j in J]
        for j in J:
            L += ["v_exp_f32 v%d, v%d" % (T + j, T + j), "v_mul_f32 v%d, v%d, v%d" % (U + b + j, G + b + j, U + b + j)]
        L += ["v_fma_f32 v%d, v%d, v30, v30" % (T + j, T + j) for j in J]
        L += ["v_rcp_f32 v%d, v%d" % (T + j, T + j) for j in J]
        L += ["v_mul_f32 v%d, v%d, v%d" % (U + b + j, U + b + j, T + j) for j in J]
        L += ["v_cvt_pk_bf16_f32 v%d, v%d, v%d" % (O + b // 2 + j, U + b + 2 * j, U + b + 2 * j + 1) for j in range(2)]
    return L

class Gen:
    def __init__(self, stamps=False, opt=()):
        self.a = Asm(); self.st = Stamps(stamps, 0); self.opt = set(opt); self.nl = 0
        self.label = NAME + "_kernel"
    def lab(self, s):
        self.nl += 1; return "L%s_%d" % (s, self.nl)
    def mark(self, n):
        if 'stj' in self.opt:
            n = {0: 0, 7: 13}.get(n) if isinstance(n, int) else n[1] + 1
        elif not isinstance(n, int): n = None
        def f(a):
            if self.st.on and n is not None:
                r = self.st.reg(n)
                a("s_memtime s[%d:%d]" % (r, r + 1)); self.st.n = max(self.st.n, n + 1)
        return f
    def check(self, ld, regs):
        def f(a):
            ok = self.lab("ok"); sp = self.lab("sp")
            def cmp(raw):
                em = (lambda s: a.raw("    " + s)) if raw else a
                if len(regs) == 1:
                    em("v_cmp_ne_u32 vcc, s%d, v%d" % (NONCE, regs[0]))
                else:
                    for r in regs: em("v_xor_b32 v%d, s%d, v%d" % (r, NONCE, r))
                    em("v_or3_b32 v%d, v%d, v%d, v%d" % (regs[0], regs[0], regs[1], regs[2]))
                    em("v_or_b32 v%d, v%d, v%d" % (regs[0], regs[0], regs[3]))
                    em("v_cmp_ne_u32 vcc, 0, v%d" % regs[0])
                em("s_nop 1")
                em("s_cmp_eq_u64 vcc, 0")
                em("s_cbranch_scc1 " + ok)
            cmp(False)
            a.raw("    s_movk_i32 s3, %d" % SPIN)
            a.label(sp)
            a.raw("    " + ld)
            a.raw("    s_waitcnt vmcnt(0)")
            cmp(True)
            a.raw("    s_sub_u32 s3, s3, 1")
            a.raw("    s_cbranch_scc0 " + sp)
            a.label(ok)
        return f
    def lane0(self, items):
        return ["s_mov_b64 exec, 1"] + items + ["s_mov_b64 exec, -1"]

    def issue(self, j):
        tg = "P%d" % j; L = []
        if j < 8:
            L += ["s_add_u32 m0, s54, %d" % slot(j, 0), "s_add_u32 s34, s53, %d" % (j * 128),
                  ("buffer_load_dwordx4 v3, s[4:7], s34 offen lds", tg), ("buffer_load_dwordx4 v4, s[4:7], s34 offen offset:1024 lds", tg),
                  "s_add_u32 m0, s55, %d" % slot(j, 1), "s_add_u32 s34, s64, %d" % (j * 64 * 3584),
                  ("buffer_load_dwordx4 v5, s[8:11], s34 offen lds", tg),
                  "s_add_u32 m0, s55, %d" % (slot(j, 1) + 8192), ("buffer_load_dwordx4 v6, s[12:15], s34 offen lds", tg)]
        else:
            for e in range(2):
                u = 2 * j + e
                if j < 10: so, rows, vg = "s65", 128 * (u - 16), 7
                else: so, rows, vg = "s66", 256 * (u - 20), 9
                L += ["s_add_u32 m0, s55, %d" % slot(j, e), "s_add_u32 s34, %s, %d" % (so, rows * 3584),
                      ("buffer_load_dwordx4 v%d, s[8:11], s34 offen lds" % vg, tg),
                      "s_add_u32 m0, s55, %d" % (slot(j, e) + 8192), ("buffer_load_dwordx4 v%d, s[12:15], s34 offen lds" % (vg + 1), tg)]
        return L

    def prologue(self):
        a = self.a; L = self.label
        begin(a, L)
        a("s_load_dwordx16 s[16:31], s[0:1], 0")
        a("s_load_dwordx16 s[32:47], s[0:1], 64")
        self.mark(0)(a)
        a("s_cmp_ge_u32 s2, 256")
        a("s_cbranch_scc1 %s_end" % L)
        code_prefetch(a, L, 250, 0, 251)
        a("v_lshrrev_b32 v1, 6, v0")
        a("v_and_b32 v0, 63, v0")
        a("v_readfirstlane_b32 s101, v1")
        a("""s_and_b32 s48, s2, 1
        s_lshl_b32 s48, s48, 3
        s_bfe_u32 s3, s2, 0x30003
        s_add_u32 s48, s48, s3
        s_bfe_u32 s67, s2, 0x20001
        s_lshl_b32 s49, s67, 2
        s_lshr_b32 s3, s2, 6
        s_add_u32 s49, s49, s3
        s_and_b32 s50, s2, 7
        s_lshl_b32 s51, s50, 2
        s_lshl_b32 s50, s50, 5
        s_lshr_b32 s3, s2, 3
        s_add_u32 s50, s50, s3
        s_bfe_u32 s68, s2, 0x20003
        s_add_u32 s51, s51, s68
        s_lshr_b32 s52, s2, 5""")
        a("v_lshlrev_b32 v2, 4, v0")
        a("v_lshrrev_b32 v11, 3, v0")
        a("v_and_b32 v12, 0x70, v2")
        a("v_mul_u32_u24 v5, 3584, v11")
        a("v_add_u32 v13, v5, v12")
        a("v_and_b32 v14, 16, v0")
        a("v_lshlrev_b32 v14, 1, v14")
        a("v_xor_b32 v5, v13, v14")
        a("v_xor_b32 v6, 64, v5")
        a("v_and_b32 v14, 48, v0")
        a("v_xor_b32 v3, v12, v14")
        a("v_lshl_or_b32 v3, v11, 10, v3")
        a("v_xor_b32 v4, 64, v3")
        a("v_add_u32 v4, 7168, v4")
        a("""s_and_b32 s69, s101, 1
        s_lshl_b32 s3, s50, 1
        s_add_u32 s3, s3, s69
        s_lshl_b32 s3, s3, 8
        s_and_b32 s69, s101, 2
        s_lshl_b32 s69, s69, 6
        s_add_u32 s3, s3, s69""")
        a("v_lshl_add_u32 v14, v0, 1, s3")
        for i in range(6): a("v_mov_b32 v%d, 0" % (208 + i))
        a("""s_lshl_b32 s53, s48, 3
        s_add_u32 s53, s53, s101
        s_lshl_b32 s53, s53, 14
        s_lshl_b32 s54, s101, 11
        s_lshl_b32 s55, s101, 10
        s_mul_i32 s66, s101, %d
        s_lshl_b32 s3, s49, 7
        s_add_u32 s64, s66, s3""" % (8 * 3584))
        a("""s_lshl_b32 s96, s48, 4
        s_add_u32 s96, s96, s49
        s_lshl_b32 s97, s96, 13
        s_add_u32 s97, s97, s55""")
        a("""s_lshl_b32 s69, s67, 2
        s_add_u32 s69, s69, s52
        s_lshl_b32 s3, s67, 1
        s_add_u32 s3, s3, s52
        s_add_u32 s3, s3, 12
        s_cmp_ge_u32 s52, 4
        s_cselect_b32 s69, s3, s69
        s_add_u32 s3, s67, 24
        s_cmp_ge_u32 s52, 6
        s_cselect_b32 s69, s3, s69
        s_mul_i32 s94, s68, %d
        s_lshl_b32 s3, s69, 7
        s_add_u32 s94, s94, s3
        s_lshl_b32 s3, s66, 1
        s_add_u32 s95, s94, s3""" % (128 * 3584))
        a("v_mov_b32 v31, 0")
        srd(a, SWS, S_WS, WSZ)
        a("s_mov_b32 s3, 0x%x" % EP)
        a("buffer_load_dword v31, v31, s[56:59], s3 offen sc1")
        for i, p in enumerate((S_ARE, S_AIM, S_BRE, S_BIM, S_CRE, S_CIM)):
            a("global_load_short_d16_hi v%d, v14, s[%d:%d]" % (208 + i, p, p + 1))
        srd(a, SX, S_X, 2 << 20)
        a("buffer_load_dwordx4 v[32:35], v2, s[4:7], s97 offen")
        srd(a, SWG, S_WG, 512 * 3584)
        srd(a, SWU, S_WU, 512 * 3584)
        a("""s_bitcmp1_b32 s2, 0
        s_cselect_b32 s60, s38, s36
        s_cselect_b32 s61, s39, s37
        s_mov_b32 s62, %d
        s_mov_b32 s63, 0x00020000
        s_add_u32 s3, s95, %d""" % (512 * 3584, 8 * 3584))
        a("buffer_load_dwordx4 v[64:67], v13, s[60:63], s95 offen")
        a("buffer_load_dwordx4 v[68:71], v13, s[60:63], s3 offen")
        a("s_lshl_b32 s3, s50, 2")
        a("s_load_dword s92, s[%d:%d], s3" % (S_LDT, S_LDT + 1))
        a("s_load_dword s93, s[%d:%d], s3" % (S_DSK, S_DSK + 1))
        for j in range(3): a.E(self.issue(j))
        if 'nopf' not in self.opt:
            px = self.lab("pfx"); pj = self.lab("pfj")
            a("s_cmp_ge_u32 s101, 4")
            a("s_cbranch_scc1 " + px)
            a.save("pf")
            a("s_cmp_ge_u32 s101, 2")
            a("s_cbranch_scc1 " + pj)
            a("""s_bitcmp1_b32 s2, 0
            s_cselect_b32 s60, s36, s38
            s_cselect_b32 s61, s37, s39
            s_lshl_b32 s3, s66, 3
            s_add_u32 s3, s3, s94""")
            a("v_mul_u32_u24 v250, 3584, v0")
            a("buffer_load_dword v252, v250, s[60:63], s3 offen")
            a("s_branch " + pj)
            a.save("pf2")
            a.label(px)
            a.restore("pf")
            a("""s_and_b32 s3, s2, 1
            s_lshl_b32 s3, s3, 5
            s_lshr_b32 s90, s2, 3
            s_add_u32 s3, s3, s90
            s_lshl_b32 s3, s3, 2
            s_add_u32 s3, s3, s101
            s_sub_u32 s3, s3, 4
            s_lshl_b32 s3, s3, 13""")
            a("v_lshlrev_b32 v250, 7, v0")
            a("buffer_load_dword v252, v250, s[4:7], s3 offen")
            a.label(pj)
            a.merge("pf"); a.merge("pf2")
        self.mark(1)(a)
        a("""v_lshrrev_b32 v7, 2, v0
        v_mul_u32_u24 v7, 3584, v7
        v_and_b32 v8, 3, v0
        v_lshl_add_u32 v7, v8, 4, v7
        v_xor_b32 v8, 32, v7
        v_lshrrev_b32 v9, 1, v0
        v_xor_b32 v10, 4, v9
        v_mul_u32_u24 v9, 3584, v9
        v_mul_u32_u24 v10, 3584, v10
        v_and_b32 v1, 1, v0
        v_lshl_add_u32 v9, v1, 4, v9
        v_lshl_add_u32 v10, v1, 4, v10
        s_lshl_b32 s65, s66, 1
        s_lshl_b32 s3, s49, 6
        s_add_u32 s65, s65, s3
        s_add_u32 s65, s65, 2048
        s_lshl_b32 s66, s66, 2
        s_lshl_b32 s3, s49, 5
        s_add_u32 s66, s66, s3
        s_add_u32 s66, s66, 3072""")
        a("""v_and_b32 v21, 16, v0
        v_lshlrev_b32 v21, 2, v21
        v_xor_b32 v21, v21, v12
        v_lshl_or_b32 v21, v11, 10, v21""")
        a("""v_lshlrev_b32 v76, 4, v1
        v_mov_b32 v77, 0x3f80
        v_lshlrev_b32 v76, v76, v77
        v_bfe_u32 v77, v0, 1, 2""")
        for d in range(4):
            a("v_cmp_eq_u32 vcc, %d, v77" % d)
            a("v_cndmask_b32 v%d, 0, v76, vcc" % (72 + d))
        a("""v_and_b32 v76, 15, v0
        v_and_b32 v77, 16, v0
        v_lshl_or_b32 v76, v76, 5, v77
        s_lshl_b32 s3, s101, 9
        s_add_u32 s3, s3, %d
        v_add_u32 v76, s3, v76""" % CSB)
        a("""s_mul_i32 s3, s101, %d
        s_add_u32 s3, s3, %d
        v_add_u32 v77, s3, v2
        v_bfe_u32 v78, v0, 2, 2
        v_mul_u32_u24 v78, %d, v78
        v_lshrrev_b32 v79, 4, v0
        v_lshl_add_u32 v78, v79, 5, v78
        v_and_b32 v79, 3, v0
        v_lshl_add_u32 v78, v79, 3, v78
        s_lshl_b32 s3, s101, 7
        s_add_u32 s3, s3, %d
        v_add_u32 v78, s3, v78""" % (LNS, LNB, LNS, LNB))
        a("""s_lshr_b32 s67, s101, 2
        s_and_b32 s90, s101, 3
        v_lshrrev_b32 v22, 5, v0
        v_bfe_u32 v23, v0, 1, 3
        v_xor_b32 v23, v23, v22
        v_and_b32 v11, 31, v0
        v_lshlrev_b32 v93, 3, v11
        v_lshlrev_b32 v11, 7, v11
        v_lshl_or_b32 v11, v23, 4, v11
        s_lshl_b32 s3, s90, 12
        v_or_b32 v11, s3, v11
        v_xor_b32 v12, 32, v11
        v_xor_b32 v13, 64, v11
        v_xor_b32 v14, 0x60, v11
        v_bfe_u32 v23, v0, 2, 2
        v_lshl_add_u32 v24, v22, 3, v23
        v_lshlrev_b32 v25, 4, v1
        v_and_b32 v26, 2, v0
        v_lshl_or_b32 v25, v26, 2, v25
        v_and_b32 v26, 16, v0
        v_lshl_or_b32 v27, v26, 9, v25""")
        a("""v_lshl_or_b32 v15, v24, 7, v27
        v_and_b32 v28, 24, v0
        v_lshl_or_b32 v15, v28, 2, v15
        s_lshl_b32 s3, s67, 6
        v_xor_b32 v15, s3, v15
        v_add_u32 v15, %d, v15
        v_xor_b32 v16, 32, v15
        v_lshl_or_b32 v17, v24, 6, v27
        v_lshl_or_b32 v17, v26, 1, v17
        s_lshl_b32 s3, s67, 5
        v_xor_b32 v17, s3, v17
        v_add_u32 v18, %d, v17
        v_lshl_or_b32 v19, v24, 5, v27
        v_lshl_or_b32 v19, v26, 3, v19
        s_mul_i32 s3, s67, %d
        s_add_u32 s3, s3, %d
        v_add_u32 v19, s3, v19
        v_xor_b32 v20, 128, v19""" % (ODD, ODD, ODD, slot(10, 0)))
        a("""v_mul_u32_u24 v92, %d, v26
        v_and_b32 v28, 3, v0
        v_lshl_or_b32 v92, v28, 5, v92
        v_and_b32 v28, 4, v0
        v_lshl_or_b32 v92, v28, 6, v92
        v_and_b32 v28, 8, v0
        v_lshl_or_b32 v92, v28, 4, v92
        v_lshl_or_b32 v92, v22, 4, v92""" % (1792 * 2))
        a("""v_lshl_or_b32 v22, v24, 7, v25
        v_lshl_or_b32 v22, v26, 1, v22
        v_lshl_or_b32 v22, v28, 3, v22
        v_add_u32 v22, s54, v22
        v_xor_b32 v23, 64, v22""")
        a("""v_lshrrev_b32 v94, 1, v0
        v_lshlrev_b32 v94, 13, v94
        v_lshl_or_b32 v94, v1, 4, v94
        s_lshl_b32 s3, s101, 18
        s_lshl_b32 s91, s50, 5
        s_add_u32 s3, s3, s91
        v_add_u32 v94, s3, v94
        v_subrev_u32 v95, 0x2000, v94""")
        a("""s_lshl_b32 s91, s48, 2
        s_add_u32 s91, s91, s90
        s_mul_i32 s91, s91, %d
        s_add_u32 s91, s91, %d""" % (112 * 1024, HF))
        a("v_readfirstlane_b32 s100, v31")
        a("s_add_u32 s100, s100, 1")

    def ln(self):
        a = self.a
        for i in range(4):
            a("v_lshlrev_b32 v%d, 16, v%d" % (36 + 2 * i, 32 + i))
            a("v_and_b32 v%d, 0xffff0000, v%d" % (37 + 2 * i, 32 + i))
        self.mark(2)(a)
        a("""v_add_f32 v44, v36, v37
        v_add_f32 v45, v38, v39
        v_add_f32 v46, v40, v41
        v_add_f32 v47, v42, v43
        v_add_f32 v44, v44, v45
        v_add_f32 v46, v46, v47
        v_add_f32 v44, v44, v46""")
        dpp_sum(a, 44, 3)
        a("v_mov_b32 v44, %s" % fx(1.0 / 512))
        a("v_mul_f32 v44, s3, v44")
        a("""v_sub_f32 v45, v36, v44
        v_sub_f32 v46, v37, v44
        v_mul_f32 v45, v45, v45
        v_mul_f32 v46, v46, v46""")
        for i in range(1, 4):
            a("v_sub_f32 v32, v%d, v44" % (36 + 2 * i))
            a("v_sub_f32 v33, v%d, v44" % (37 + 2 * i))
            a("v_fmac_f32 v45, v32, v32")
            a("v_fmac_f32 v46, v33, v33")
        a("v_add_f32 v45, v45, v46")
        a("v_cvt_pk_bf16_f32 v48, v44, v44")
        a("v_and_b32 v44, 0xffff0000, v48")
        for i in range(8): a("v_sub_f32 v%d, v%d, v44" % (36 + i, 36 + i))
        dpp_sum(a, 45, 3)
        for i in range(4): a("v_cvt_pk_bf16_f32 v%d, v%d, v%d" % (32 + i, 36 + 2 * i, 37 + 2 * i))
        a("v_mov_b32 v45, %s" % fx(1.0 / 512))
        a("v_mul_f32 v45, s3, v45")
        a("v_cvt_pk_bf16_f32 v45, v45, v45")
        a("v_and_b32 v45, 0xffff0000, v45")
        a("v_add_f32 v45, %s, v45" % fx(1e-5))
        a("v_cvt_pk_bf16_f32 v45, v45, v45")
        a("v_and_b32 v45, 0xffff0000, v45")
        a("v_sqrt_f32 v45, v45")
        for i in range(4):
            a("v_lshlrev_b32 v%d, 16, v%d" % (36 + 2 * i, 32 + i))
            a("v_and_b32 v%d, 0xffff0000, v%d" % (37 + 2 * i, 32 + i))
        a("v_cvt_pk_bf16_f32 v45, v45, v45")
        a("v_and_b32 v49, 0xffff0000, v45")
        a("v_rcp_f32 v46, v49")
        a("v_xor_b32 v48, 0x80008000, v48")
        a("v_fma_f32 v47, -v49, v46, 1.0")
        a("v_fmac_f32 v46, v47, v46")
        for i in range(8): a("v_mul_f32 v%d, v%d, v46" % (36 + i, 36 + i))
        for i in range(4): a("v_cvt_pk_bf16_f32 v%d, v%d, v%d" % (32 + i, 36 + 2 * i, 37 + 2 * i))
        a("ds_write_b128 v77, v[32:35]")
        a("s_lshr_b32 s3, s97, 7")
        a("v_mov_b32 v31, 0")
        a.E(self.lane0([("buffer_store_dwordx2 v[48:49], v31, s[56:59], s3 offen sc1", "LN")]))
        a("v_mfma_f32_16x16x32_bf16 v[36:39], v[72:75], v[64:67], 0")
        a("v_mfma_f32_16x16x32_bf16 v[36:39], v[72:75], v[68:71], v[36:39]")
        a("""s_lshl_b32 s97, s96, 13
        s_add_u32 s97, s97, s55
        s_add_u32 s97, s97, 0x%x""" % XNT)
        a("ds_write_b128 v76, v[36:39]")
        a.barrier()
        a("ds_read_b64_tr_b16 v[32:33], v78")
        a("ds_read_b64_tr_b16 v[34:35], v78 offset:%d" % (4 * LNS))
        sk = self.lab("cs")
        a("s_cmp_ge_u32 s101, 2")
        a("s_cbranch_scc1 " + sk)
        a.save("cs")
        a("s_lshl_b32 s3, s101, 8")
        a("s_add_u32 s3, s3, %d" % CSB)
        a("v_lshl_add_u32 v36, v0, 2, s3")
        for i in range(4): a("ds_read2st64_b32 v[%d:%d], v36 offset0:%d offset1:%d" % (40 + 2 * i, 41 + 2 * i, 4 * i, 4 * i + 2))
        a("""s_and_b32 s3, s2, 1
        s_mul_i32 s3, s3, 28
        s_add_u32 s3, s3, s69
        s_lshl_b32 s3, s3, 8
        s_add_u32 s3, s3, s68
        s_lshl_b32 s3, s3, 1
        s_add_u32 s3, s3, s101
        s_lshl_b32 s3, s3, 2
        s_add_u32 s3, s3, %d
        v_lshlrev_b32 v36, 5, v0""" % CS)
        a("""v_add_f32 v40, v40, v41
        v_add_f32 v42, v42, v43
        v_add_f32 v44, v44, v45
        v_add_f32 v46, v46, v47
        v_add_f32 v40, v40, v42
        v_add_f32 v44, v44, v46
        v_add_f32 v40, v40, v44
        v_cvt_pk_bf16_f32 v41, v40, v40
        v_and_b32 v41, 0xffff0000, v41
        v_sub_f32 v41, v40, v41
        v_cvt_pk_bf16_f32 v41, v40, v41""")
        a("buffer_store_dword v41, v36, s[56:59], s3 offen sc1", tag="LN")
        a.label(sk)
        a.merge("cs")
        a("buffer_store_dwordx4 v[32:35], v2, s[56:59], s97 offen sc1", tag="LN")
        srd(a, SWD, S_WD, 1792 * 1024)

    def kg_pre(self):
        LH = struct.unpack('<f', struct.pack('<I', f2u(LOG2E) & 0xffffff00))[0]
        return ["s_and_b32 s68, s101, 1", "s_bfe_u32 s69, s101, 0x10001",
                "s_lshl_b32 s3, s68, 4", "s_lshr_b32 s92, s92, s3", "s_lshl_b32 s92, s92, 16",
                "v_mov_b32 v214, %s" % fx(LH), "v_mov_b32 v215, %s" % fx(LOG2E - LH),
                "v_mul_f32 v214, s92, v214", "v_mul_f32 v215, s92, v215", "v_exp_f32 v214, v214", "v_exp_f32 v215, v215",
                "s_mul_i32 s94, s68, %d" % SCH, "s_add_u32 s94, s94, %d" % R2, "s_lshl_b32 s3, s69, 8", "s_add_u32 s3, s3, s94",
                "v_lshl_add_u32 v1, v0, 2, s3",
                "v_mul_f32 v214, v214, v215", "v_cvt_pk_bf16_f32 v214, v214, v214", "v_and_b32 v214, 0xffff0000, v214",
                "v_mul_f32 v208, v214, v208", "v_mul_f32 v209, v214, v209"]
    def kg_chain(self, role):
        L = []; T = [216]
        def put(row, r):
            L.append("v_cvt_pk_bf16_f32 v%d, v%d, v%d" % (T[0], r, r + 1))
            L.append("ds_write_b32 v1, v%d offset:%d" % (T[0], row * RS))
            T[0] = 216 + (T[0] - 216 + 1) % 4
        OR = 22
        if role == 0:
            F = lambda b: 224 + 2 * (b % 8)
            L += cexp(F(1), 208, 209, 8.0, 220)
            L += ["v_mov_b32 v216, 0x3f80", "ds_write_b32 v1, v216 offset:%d" % (OR * RS)]; T[0] = 217
            L += cmul(F(2), F(1), F(1)); put(OR + 1, F(1))
            L += cmul(F(3), F(2), F(1)); L += cmul(222, F(2), F(2))
            put(OR + 2, F(2)); put(OR + 3, F(3)); put(OR + 4, 222)
            for b in range(5, 32):
                L += cmul(F(b), 222 if b == 8 else F(b - 4), 222)
                if b > 5: put(OR + b - 1, F(b - 1))
            put(OR + 31, F(31))
        else:
            G = lambda i: 230 + 2 * (i % 13)
            L += ["v_mul_f32 v210, v214, v210", "v_mul_f32 v211, v214, v211", "v_xor_b32 v209, 0x80000000, v209"]
            L += cexp(222, 208, 209, 1.0, 220)
            L += cmul(G(0), 212, 210)
            L += cexp(228, 208, 209, 256.0, 220)
            L += ["v_xor_b32 v%d, 0x80000000, v%d" % (G(0) + 1, G(0) + 1)]
            L += cmul(224, 222, 222)
            L += cmul(G(1), G(0), 222); put(0, G(0))
            L += cmul(226, 224, 224)
            L += cmul(G(2), G(0), 224); put(1, G(1))
            L += cmul(G(3), G(1), 224); put(2, G(2))
            for i in range(4):
                L += cmul(G(4 + i), G(i), 226); put(3 + i, G(3 + i))
            for i in range(4):
                L += cmul(G(8 + i), G(2 * i), 228); put(7 + i, G(7 + i))
            H20, H21 = 222, 224
            L += cmul(G(12), G(8), 228); put(11, G(11))
            L += cmul(H20, G(10), 228); put(12, G(12))
            L += cmul(G(13), G(12), 228); put(20, H20)
            L += cmul(H21, H20, 228); put(13, G(13))
            L += cmul(G(14), G(13), 228); put(21, H21)
            for i in range(15, 19):
                L += cmul(G(i), G(i - 1), 228); put(i - 1, G(i - 1))
            put(18, G(18))
        return L
    def kg_addr(self):
        pk = lambda l: (2 * l[0] | (2 * l[1]) << 16, 2 * l[2] | (2 * l[3]) << 16)
        b0, b1, s0_, s1_ = pk([0, 4, 256, 512]), pk([1536, 516, 2304, 2304]), pk([1, 1, 2, 256]), pk([256, 256, 0, 0])
        L = ["v_and_b32 v70, 15, v0", "v_mul_u32_u24 v65, %d, v70" % RS, "v_and_b32 v71, 48, v0", "v_add_u32 v65, v65, v71",
             "s_mul_i32 s3, s69, %d\ns_add_u32 s3, s3, s94\nv_add_u32 v64, s3, v65" % (16 * RS),
             "s_mul_i32 s3, s67, %d\ns_add_u32 s3, s3, s94\ns_add_u32 s3, s3, %d\nv_add_u32 v65, s3, v65" % (16 * RS, 22 * RS),
             "s_cmp_eq_u32 s69, 0\ns_mov_b32 s98, 0x%x\ns_cmov_b32 s98, 0x%x\ns_mov_b32 s99, 0x%x\ns_cmov_b32 s99, 0x%x\nv_lshrrev_b64 v[66:67], v71, s[98:99]" % (b1[0], b0[0], b1[1], b0[1]),
             "s_cmp_eq_u32 s69, 0\ns_mov_b32 s98, 0x%x\ns_cmov_b32 s98, 0x%x\ns_mov_b32 s99, 0x%x\ns_cmov_b32 s99, 0x%x\nv_lshrrev_b64 v[68:69], v71, s[98:99]" % (s1_[0], s0_[0], s1_[1], s0_[1]),
             "v_and_b32 v66, 0xffff, v66", "v_and_b32 v68, 0xffff, v68",
             "s_mul_i32 s3, s68, %d\ns_lshl_b32 s98, s67, 8\ns_add_u32 s3, s3, s98\ns_add_u32 s3, s3, %d\nv_lshl_add_u32 v66, v70, 4, v66\nv_add_u32 v66, s3, v66" % (TST, TB + 16),
             "v_add_u32 v67, v66, v68", "v_add_u32 v69, v67, v68", "v_add_u32 v68, v69, v68"]
        return L
    def kg_mfma(self):
        L = []
        def rd(s):
            r = 224 + 8 * (s % 4)
            return ["ds_read_b128 v[%d:%d], v64 offset:%d" % (r, r + 3, 64 * s), "ds_read_b128 v[%d:%d], v65 offset:%d" % (r + 4, r + 7, 64 * s)]
        for s in range(4): L += rd(s)
        for s in range(8):
            r = 224 + 8 * (s % 4)
            L.append("v_mfma_f32_16x16x32_bf16 v[72:75], v[%d:%d], v[%d:%d], %s" % (r, r + 3, r + 4, r + 7, "0" if s == 0 else "v[72:75]"))
            if s < 4: L += rd(s + 4)
        L += ["v_cvt_pk_bf16_f32 v72, v72, v73", "v_cvt_pk_bf16_f32 v74, v74, v75"]
        return L
    def kg_tw(self):
        L = ["ds_write_b16 v66, v72", "ds_write_b16_d16_hi v67, v72", "ds_write_b16 v69, v74", "ds_write_b16_d16_hi v68, v74"]
        L += ["v_mov_b32 v%d, 0" % (76 + i) for i in range(4)]
        L += ["v_lshrrev_b32 v64, 4, v0", "v_mul_u32_u24 v64, %d, v64" % KCP, "v_and_b32 v65, 15, v0", "v_lshl_add_u32 v64, v65, 4, v64",
              "v_add_u32 v64, %d, v64" % (KR + 4096), "v_mov_b32 v65, %d" % TB,
              "ds_write_b128 v64, v[76:79]", "ds_write_b128 v64, v[76:79] offset:128",
              "ds_write_b128 v65, v[76:79]", "ds_write_b128 v65, v[76:79] offset:%d" % TST]
        return L
    def kg_xaddr(self):
        B = 64
        L = ["s_lshl_b32 s3, s90, 10\nv_add_u32 v1, s3, v2", "v_sub_u32 v%d, 4094, v1" % B, "v_cvt_f32_i32 v%d, v%d" % (B, B)]
        L += ["v_subrev_f32 v%d, %s, v%d" % (B + j, fx(2.0 * j), B) for j in range(1, 9)]
        L += ["v_cvt_pk_bf16_f32 v%d, v%d, v%d" % (B + 1 + j, B + j, B + 1 + j) for j in range(0, 8, 2)]
        L += ["v_cvt_pk_bf16_f32 v%d, v%d, v%d" % (B + 8, B + 8, B + 8)]
        for j in range(0, 8, 2):
            L += ["v_lshlrev_b32 v%d, 16, v%d" % (B + j, B + 1 + j), "v_and_b32 v%d, 0xffff0000, v%d" % (B + 1 + j, B + 1 + j)]
        L += ["v_and_b32 v%d, 0xffff0000, v%d" % (B + 8, B + 8)]
        L += ["v_cvt_i32_f32 v%d, v%d" % (B + j, B + j) for j in range(9)]
        L += ["s_mul_i32 s98, s67, %d\ns_add_u32 s98, s98, %d" % (TST, TB + 16)]
        L += ["v_add_u32 v%d, s98, v%d" % (B + j, B + j) for j in range(9)]
        L += ["s_mul_i32 s3, s67, %d\ns_add_u32 s3, s3, %d\nv_add_u32 v1, s3, v1" % (2 * KCP, KR)]
        return L
    def kg_expand(self):
        B = 64
        L = ["ds_read_u16 v%d, v%d" % (B + j, B + j) for j in range(9)]
        for i in range(4):
            L += ["v_lshl_or_b32 v%d, v%d, 16, v%d" % (76 + i, B + 2 + 2 * i, B + 1 + 2 * i),
                  "v_lshl_or_b32 v%d, v%d, 16, v%d" % (B + i, B + 1 + 2 * i, B + 2 * i)]
        L += ["ds_write_b128 v1, v[76:79]", "ds_write_b128 v1, v[%d:%d] offset:%d" % (B, B + 3, KCP)]
        return L

    def wd_issue(self, i):
        row = (16 * i if i < 8 else 1024 + 16 * (i - 8) if i < 12 else 1536 + 16 * (i - 12))
        so = "s53" if i < 8 else "s64" if i < 12 else "s65"
        tg = "D%d" % i
        return ["s_add_u32 m0, s54, %d\ns_add_u32 s35, %s, %d" % (WSL[i % 6] * 16384, so, row * 1024),
                ("buffer_load_dwordx4 v21, s[60:63], s35 offen lds", tg),
                "s_add_u32 s35, s35, 7168",
                ("buffer_load_dwordx4 v21, s[60:63], s35 offen offset:1024 lds", tg)]
    def wd_reg(self, i): return 192 + 8 * i if i < 8 else 128 + 8 * (i - 8)
    def wd_read(self, i):
        s = WSL[i % 6]; r = self.wd_reg(i)
        L = [lambda a: a.wait_tag("D%d" % i)]
        for t in range(2):
            for jj in range(2):
                L.append("ds_read_b64_tr_b16 v[%d:%d], v%d offset:%d" % (r + 4 * t + 2 * jj, r + 4 * t + 2 * jj + 1, (22 if s < 4 else 5) + t, (s & 3) * 16384 + jj * 512))
        return L
    def wd_next(self, i):
        if i + 6 >= 14: return []
        r = self.wd_reg(i)
        return [lambda a: a.wait_regs(r, r + 7)] + self.wd_issue(i + 6)

    def gemm1(self, p):
        a = self.a
        xr = lambda k: XB + 4 * ((k + 16 * p) % 32)
        steps = []
        for j in range(8):
            ops = []
            for ks in range(4):
                for t in range(2):
                    rd = [(15 + t, slot(j, 0) + ks * 2048 + jj * 512) for jj in range(2)]
                    xrd = "ds_read_b128 v[%d:%d], v%d offset:%d" % (xr(4 * j + ks), xr(4 * j + ks) + 3, 11 + ks, slot(j, 0)) if t == 0 else None
                    ops.append((ACA + 16 * t, xr(4 * j + ks), rd, j == 0 and ks == 0, xrd))
            steps.append(ops)
        for j in (8, 9):
            ops = []
            for e in range(2):
                for ks in range(8):
                    k = 16 * (j - 8) + 8 * e + ks
                    ops.append((ACB, xr(k), [(17 + e, slot(j, 0) + ks * 1024 + jj * 256) for jj in range(2)], k == 0, None))
            steps.append(ops)
        steps.append([(ACC, xr(16 * p + ks), [(19 + jj, ks * 512) for jj in range(2)], ks == 0, None) for ks in range(16)])
        inter = 'kgi' in self.opt
        chain = self.kg_chain(p)
        so_a = "s_lshl_b32 s98, s49, 12\ns_add_u32 s98, s98, s91\ns_add_u32 s98, s98, %d" % (2048 * p)
        epA0 = [so_a] + geglu(ACA, ACA + 8, 8, 88, ACA) + [("buffer_store_dwordx4 v[%d:%d], v2, s[56:59], s98 offen sc1" % (ACA, ACA + 3), "H")]
        epA1 = geglu(ACA + 16, ACA + 24, 8, 36, ACA + 16) + [("buffer_store_dwordx4 v[%d:%d], v2, s[56:59], s98 offen offset:1024 sc1" % (ACA + 16, ACA + 19), "H")]
        so_b = "s_lshl_b32 s98, s49, 11\ns_add_u32 s98, s98, s91\ns_add_u32 s98, s98, %d" % (65536 + 1024 * p)
        epB = [so_b] + geglu(ACB, ACB + 8, 8, 36, ACB) + [("buffer_store_dwordx4 v[%d:%d], v2, s[56:59], s98 offen sc1" % (ACB, ACB + 3), "H")]
        ld_poll = "buffer_load_dwordx4 v[24:27], v2, s[56:59], s99 offen sc1"
        carry = []; n = 0
        for j, ops in enumerate(steps):
            last = j == 10
            seq = carry + [(n + i, o) for i, o in enumerate(ops[:len(ops) - (0 if last else 4)])]
            carry = [] if last else [(n + i, ops[i]) for i in range(len(ops) - 4, len(ops))]
            nM = len(seq)
            pos = {k: [] for k in range(-1, nM)}
            for i, o in enumerate(ops):
                k = -1 if j == 0 else (i // 2 if i < 4 else i - 2)
                b = WF + 4 * ((n + i) % 8)
                if o[4]: pos[k].append(o[4])
                for jj, (ar, off) in enumerate(o[2]):
                    pos[k].append("ds_read_b64_tr_b16 v[%d:%d], v%d offset:%d" % (b + 2 * jj, b + 2 * jj + 1, ar, off))
            pre = []
            if 1 <= j <= 8:
                iss = self.issue(j + 2)
                spread(pos, iss, 0, min(nM, 6))
            if j == 3:
                if p == 0:
                    sk = self.lab("fl")
                    def post(a, sk=sk):
                        a("s_cmp_lg_u32 s101, 0"); a("s_cbranch_scc1 " + sk); a.save("fl")
                        a("s_lshl_b32 s3, s96, 2\ns_add_u32 s3, s3, %d\nv_mov_b32 v24, s100" % FL)
                        a.E(self.lane0(["buffer_store_dword v24, v31, s[56:59], s3 offen sc1"]))
                        a.label(sk); a.merge("fl")
                    pos[0].insert(0, post)
            if j == 5 and p == 0:
                sk = self.lab("pl")
                def poll(a, sk=sk):
                    a("s_cmp_lg_u32 s101, 0"); a("s_cbranch_scc1 " + sk); a.save("pl")
                    a("s_mov_b32 s99, %d" % FL); a(ld_poll)
                    a.label(sk); a.merge("pl")
                pos[0].insert(0, poll)
            if j == 5 and 'nopf' not in self.opt:
                pos[6] += ["s_lshr_b32 s3, s2, 3\ns_mul_i32 s3, s3, 7\ns_min_u32 s98, s101, 6\ns_add_u32 s3, s3, s98\ns_lshl_b32 s3, s3, 13",
                           "v_lshlrev_b32 v3, 7, v0", "buffer_load_dword v3, v3, s[60:63], s3 offen"]
            if j == 7 and p == 0:
                sk = self.lab("ck")
                def chk(a, sk=sk):
                    a("s_cmp_lg_u32 s101, 0"); a("s_cbranch_scc1 " + sk); a.save("ck")
                    a("s_mov_b32 s99, %d" % FL)
                    self.check(ld_poll, [24, 25, 26, 27])(a)
                    a("s_cmp_lg_u32 s2, 0"); a("s_cbranch_scc1 " + sk)
                    a("s_mov_b32 s3, %d\nv_mov_b32 v24, s100" % EP)
                    a.E(self.lane0(["buffer_store_dword v24, v31, s[56:59], s3 offen sc1"]))
                    a.label(sk); a.merge("ck")
                pre.append(chk)
            if j == 7:
                pos[0] = ["s_lshl_b32 s3, s48, 2\ns_add_u32 s3, s3, s90\ns_lshl_b32 s3, s3, 8",
                          "buffer_load_dwordx2 v[28:29], v93, s[56:59], s3 offen sc1",
                          "s_lshl_b32 s99, s49, 11\ns_add_u32 s99, s99, %d" % (CS + 1024 * p),
                          "buffer_load_dwordx4 v[80:83], v92, s[56:59], s99 offen sc1",
                          "buffer_load_dwordx4 v[84:87], v92, s[56:59], s99 offen offset:512 sc1"] + pos[0]
            if j == 8:
                pos[4] += ["v_mov_b32 v%d, v28" % (24 + i) for i in range(4)] + ["v_mul_f32 v30, v29, v29", "v_rcp_f32 v29, v29"]
                pos[5] += [mf32(ACA, 80, 24), "v_mul_f32 v28, %s, v29" % fx(C1), "v_mul_f32 v3, v29, v29", mf32(ACA + 16, 84, 24),
                           "v_mul_f32 v29, 0x%08x, v28" % f2u(0.044715), "v_mul_f32 v29, v29, v3"]
                pos[6] += ["s_mov_b32 s3, 0x%x" % XNT, "buffer_load_dwordx4 v[84:87], v94, s[56:59], s3 offen sc1"]
                pos[7] += ["v_cmp_gt_i32 vcc, 0, v95", "v_max_i32 v95, 0, v95", "s_mov_b32 s3, 0x%x" % XNT, "buffer_load_dwordx4 v[80:83], v95, s[56:59], s3 offen sc1",
                           "s_mov_b64 s[96:97], vcc"]
                h = len(epA0) * 3 // 5
                spread(pos, epA0[:h], 8, 16)
                pos[8] += ["s_lshl_b32 s3, s52, 7\ns_lshl_b32 s53, s101, 17\ns_add_u32 s53, s53, s3\ns_lshl_b32 s64, s101, 16\ns_add_u32 s64, s64, s3\ns_lshl_b32 s65, s101, 15\ns_add_u32 s65, s65, s3"]
            if j == 9:
                spread(pos, self.wd_issue(0) + self.wd_issue(1), 0, 4)
                spread(pos, epA0[h:], 0, 5)
                pos[5] += ["s_lshl_b32 s99, s49, 10\ns_add_u32 s99, s99, %d" % (CS + 32768 + 512 * p), "buffer_load_dwordx4 v[40:43], v92, s[56:59], s99 offen sc1"]
                if p == 0:
                    pos[6] += ["s_lshl_b32 s99, s49, 9\ns_add_u32 s99, s99, %d" % (CS + 49152), "buffer_load_dwordx4 v[44:47], v92, s[56:59], s99 offen sc1"]
                ub = ["v_cndmask_b32 v%d, v%d, 0, s[96:97]" % (81 + i, 81 + i) for i in range(3)]
                ub += ["v_lshrrev_b32 v3, 5, v0", "s_lshl_b32 s3, s101, 1\nv_add_u32 v3, s3, v3", "v_mul_u32_u24 v3, %d, v3" % URS,
                       "v_and_b32 v4, 30, v0", "v_lshl_add_u32 v3, v4, 3, v3", "v_and_b32 v4, 1, v0", "v_mul_u32_u24 v4, %d, v4" % UCH,
                       "v_add_u32 v3, v3, v4", "v_add_u32 v3, %d, v3" % (UB + URS)]
                ub += ["v_mov_b32 v%d, v%d" % (88 + i, 81 + i) for i in range(6)]
                ub += ["ds_write_b128 v3, v[84:87]", "ds_write_b128 v3, v[90:93] offset:%d" % UCP,
                       "ds_write_b128 v3, v[82:85] offset:%d" % (2 * UCP), "ds_write_b128 v3, v[88:91] offset:%d" % (3 * UCP)]
                ub += ["v_mov_b32 v%d, 0" % (80 + i) for i in range(2)]
                ub += ["v_and_b32 v4, 31, v0", "s_mul_i32 s3, s101, %d\ns_add_u32 s3, s3, %d\nv_lshl_add_u32 v4, v4, 3, s3" % (UCP, UB), "ds_write_b64 v4, v[80:81]"]
                spread(pos, ub, 7, 11)
                h1 = len(epA1) * 3 // 5
                spread(pos, epA1[:h1], 5, 16)
                pos[12] += ["v_add_u32 v5, 0x10000, v22", "v_add_u32 v6, 0x10000, v23"]
            if j == 10:
                spread(pos, self.wd_issue(2), 0, 2)
                spread(pos, epA1[h1:], 0, 6)
                pos[4] += [mf32(ACB, 40, 24)]
                if p == 0: pos[5] += [mf32(ACC, 44, 24)]
                spread(pos, epB, 7, 20)
                pos[5] += self.wd_read(0); pos[6] += self.wd_read(1)
                pos[8] += self.wd_next(0); pos[10] += self.wd_next(1)
                pos[13] += self.wd_read(2); pos[16] += self.wd_next(2)
                pos[17] += ["v_add_u32 v3, s54, v2", "v_xor_b32 v4, 0x2000, v3"]
            if inter:
                if j < 5:
                    c0 = len(chain) * j // 5; c1 = len(chain) * (j + 1) // 5
                    spread(pos, chain[c0:c1] + (self.kg_addr() if j == 4 else []), 0, nM)
                elif j == 5: spread(pos, self.kg_mfma(), 0, nM)
                elif j == 6: spread(pos, self.kg_tw() + self.kg_xaddr(), 0, nM)
                elif j == 7: spread(pos, self.kg_expand(), 1, nM)
            a.E(pre)
            if j == 7: self.mark(('j', 11))(a)
            a.wait_tag("P%d" % j, *(["LN"] if j == 3 else []))
            a.barrier()
            if j in (0, 8, 10): self.mark({0: 4, 8: 5, 10: 6}[j])(a)
            self.mark(('j', j))(a)
            a.E(pos[-1])
            for k, (gi, o) in enumerate(seq):
                a(mf32(o[0], WF + 4 * (gi % 8), o[1], o[3]))
                a.E(pos[k])
            n += len(ops)
        o = 1 - p
        a("ds_write_b128 v4, v[%d:%d]" % (ACC + 4 * o, ACC + 4 * o + 3))
        a("ds_write_b128 v4, v[%d:%d] offset:1024" % (ACC + 8 + 4 * o, ACC + 11 + 4 * o))
        self.conv_addr()
        a.barrier()
        self.mark(7)(a)
        a("ds_read_b128 v[%d:%d], v3" % (64, 67))
        a("ds_read_b128 v[%d:%d], v3 offset:1024" % (68, 71))
        a.E(self.wd_issue(3) + self.wd_issue(4))
        for i in range(4):
            a("v_add_f32 v%d, v%d, v%d" % (64 + i, 64 + i, ACC + 4 * p + i))
            a("v_add_f32 v%d, v%d, v%d" % (68 + i, 68 + i, ACC + 8 + 4 * p + i))

    def conv_addr(self):
        a = self.a
        a("""s_and_b32 s68, s101, 1
        s_lshr_b32 s69, s101, 1
        v_and_b32 v7, 1, v0
        v_mul_u32_u24 v11, %d, v7
        v_bfe_u32 v7, v0, 1, 4
        v_lshrrev_b32 v8, 5, v0
        v_sub_u32 v7, v8, v7
        v_lshl_add_u32 v11, v7, 4, v11
        s_mul_i32 s3, s68, %d
        s_lshl_b32 s98, s69, 9
        s_add_u32 s3, s3, s98
        s_add_u32 s3, s3, %d
        v_add_u32 v11, s3, v11
        v_and_b32 v7, 3, v0
        v_mul_u32_u24 v12, %d, v7
        v_lshl_add_u32 v12, v8, 4, v12
        s_mul_i32 s3, s68, %d
        s_add_u32 s3, s3, %d
        v_add_u32 v12, s3, v12
        v_bfe_u32 v13, v0, 2, 3
        s_lshl_b32 s3, s69, 1
        v_add_u32 v14, s3, v13
        v_mul_u32_u24 v15, %d, v14
        v_add_u32 v15, v15, v12
        v_max_u32 v16, 6, v14
        v_subrev_u32 v16, 6, v16
        v_mul_u32_u24 v16, %d, v16
        v_add_u32 v16, v16, v12
        v_max_u32 v17, 5, v14
        v_subrev_u32 v17, 5, v17
        v_mul_u32_u24 v17, %d, v17
        v_add_u32 v17, v17, v12""" % (KCP, 2 * KCP, KR + 240, UCP, UCH, UB, URS, URS, URS))

    def hslot(self, i):
        if i < 4: return 112 + 4 * i
        if i < 8: return 176 + 4 * (i - 4)
        if i < 14: return 8 + 4 * (i - 8)
        if i < 26: return 64 + 4 * (i - 14)
        return 8 + 4 * (i - 26)
    def hload(self, i):
        mh, k = divmod(i, 14)
        so, off = ("s53", k) if k < 8 else ("s64", k - 8) if k < 12 else ("s65", k - 12)
        r = self.hslot(i); L = []
        o = mh * 112 * 1024 + (off & ~3) * 1024
        if o: L.append("s_add_u32 s3, %s, %d" % (so, o)); so = "s3"
        L.append("buffer_load_dwordx4 v[%d:%d], v2, s[56:59], %s offen offset:%d sc1" % (r, r + 3, so, (off & 3) * 1024))
        return ["\n".join(L)]

    def rest(self):
        a = self.a
        a.E(self.wd_issue(5))
        T0 = 32; T1 = 48
        def rd(s):
            r = 64 + 16 * ((s + 1) % 3)
            return ["ds_read_b128 v[%d:%d], v11 offset:%d" % (r, r + 3, 32 * s),
                    "ds_read_b128 v[%d:%d], v%d offset:%d" % (r + 4, r + 7, 16 + (s >> 3), 32 * (s & 7)),
                    "ds_read_b128 v[%d:%d], v11 offset:%d" % (r + 8, r + 11, 2048 + 32 * s),
                    "ds_read_b128 v[%d:%d], v15 offset:%d" % (r + 12, r + 15, 640 + URS * (s >> 3) + 32 * (s & 7))]
        a.E(rd(0) + rd(1))
        a.E(geglu(64, 68, 4, 72, 64))
        a("s_lshl_b32 s98, s49, 10\ns_add_u32 s98, s98, s91\ns_lshl_b32 s3, s67, 3\ns_add_u32 s98, s98, s3\ns_add_u32 s98, s98, %d" % (96 * 1024))
        a("buffer_store_dwordx2 v[64:65], v2, s[56:59], s98 offen sc1", tag="H")
        self.mark(8)(a)
        pos = {k: [] for k in range(48)}
        for s in range(14):
            R = rd(s + 2)
            pos[3 * s] += R[:2]; pos[3 * s + 1] += R[2:]
        sched = {6: 3, 7: 5, 8: 7, 3: 10, 4: 12, 5: 14, 12: 22, 13: 24, 9: 28, 10: 30, 11: 32}
        for i, k in sched.items():
            pos[k] += self.wd_read(i); pos[k + 2] += self.wd_next(i)
        pos[22] += ["s_lshl_b32 s3, s48, 1\ns_lshr_b32 s98, s90, 1\ns_add_u32 s3, s3, s98\ns_lshl_b32 s3, s3, 4\ns_add_u32 s3, s3, s49\ns_lshl_b32 s3, s3, 1\ns_and_b32 s98, s90, 1\ns_add_u32 s3, s3, s98\ns_lshl_b32 s3, s3, 1\ns_add_u32 s3, s3, s67\ns_lshl_b32 s3, s3, 2\ns_add_u32 s3, s3, %d\nv_mov_b32 v24, s100" % FH,
                    lambda a: a.wait_tag("H")] + self.lane0(["buffer_store_dword v24, v31, s[56:59], s3 offen sc1"])
        ldH = "buffer_load_dword v24, v25, s[56:59], s99 offen sc1"
        pos[36] += ["v_and_b32 v25, 7, v0", "v_lshlrev_b32 v25, 2, v25",
                    "s_lshl_b32 s99, s51, 8\ns_lshl_b32 s3, s101, 5\ns_add_u32 s99, s99, s3\ns_add_u32 s99, s99, %d" % FH, ldH]
        pw = ["v_xor_b32 v7, 3, v7", "v_lshrrev_b32 v9, 1, v7", "v_and_b32 v7, 1, v7", "v_lshlrev_b32 v18, 9, v13", "v_lshl_or_b32 v18, v9, 8, v18",
              "v_lshl_or_b32 v18, v7, 3, v18", "v_and_b32 v10, 3, v13", "v_lshl_or_b32 v9, v10, 1, v9", "v_lshlrev_b32 v10, 1, v8", "v_xor_b32 v9, v9, v10",
              "v_lshl_or_b32 v18, v9, 4, v18", "s_lshl_b32 s3, s101, 13\ns_add_u32 s3, s3, %d\nv_add_u32 v18, s3, v18" % PB,
              "v_xor_b32 v19, 16, v18", "v_xor_b32 v20, 64, v18", "v_xor_b32 v1, 0x50, v18"]
        pw += ["v_lshrrev_b32 v9, 4, v0", "v_and_b32 v10, 15, v0", "v_lshlrev_b32 v26, 1, v9", "v_xor_b32 v26, v26, v10", "v_lshlrev_b32 v26, 4, v26",
               "v_lshl_or_b32 v26, v9, 9, v26", "s_lshl_b32 s3, s90, 11\ns_lshl_b32 s98, s67, 13\ns_add_u32 s3, s3, s98\ns_add_u32 s3, s3, %d\nv_add_u32 v26, s3, v26" % PB,
               "v_xor_b32 v27, 0x110, v26",
               "v_mul_u32_u24 v28, %d, v9" % URS, "v_lshl_add_u32 v28, v10, 4, v28",
               "s_mul_i32 s3, s90, %d\ns_mul_i32 s98, s67, %d\ns_add_u32 s3, s3, s98\ns_add_u32 s3, s3, %d\nv_add_u32 v28, s3, v28" % (4 * URS, UCH, UB + URS),
               "s_lshl_b32 s3, s67, 4\ns_lshr_b32 s93, s93, s3\ns_lshl_b32 s93, s93, 16"]
        spread(pos, pw, 26, 40)
        pos[40] += ["s_mul_i32 s3, s51, %d\ns_add_u32 s3, s3, %d\ns_lshl_b32 s53, s101, 13\ns_add_u32 s53, s53, s3\ns_lshl_b32 s64, s101, 12\ns_add_u32 s64, s64, s3\ns_add_u32 s64, s64, %d\ns_add_u32 s65, s54, s3\ns_add_u32 s65, s65, %d" % (224 * 1024, HF, 65536, 96 * 1024)]
        pos[44] += ["ds_read_b128 v[28:31], v28"]
        for s in range(16):
            r = 64 + 16 * ((s + 1) % 3)
            a(mf32(T1, r, r + 4, s == 0)); a.E(pos[3 * s])
            a(mf32(T0, r + 8, r + 4, s == 0)); a.E(pos[3 * s + 1])
            a(mf32(T1, r + 8, r + 12)); a.E(pos[3 * s + 2])
        self.mark(9)(a)
        self.check(ldH, [24])(a)
        for i in range(8): a.E(self.hload(i))
        a.barrier()
        for t in range(2):
            for g in range(4):
                for rr in range(2):
                    r = T0 + 16 * t + 4 * g + 2 * rr
                    a("ds_write_b64 v%d, v[%d:%d] offset:%d" % ([18, 19, 20, 1][2 * (g & 1) + rr], r, r + 1, t * 4096 + 128 * (g >> 1)))
        for j in range(4):
            a("v_lshlrev_b32 v%d, 16, v%d" % (100 + 2 * j, 28 + j))
            a("v_and_b32 v%d, 0xffff0000, v%d" % (101 + 2 * j, 28 + j))
        for i in (8, 9): a.E(self.hload(i))
        a.barrier()
        for q in range(4):
            for hh in range(2):
                r = 64 + 8 * q + 4 * hh
                a("ds_read_b128 v[%d:%d], v%d offset:%d" % (r, r + 3, 26 + hh, q * 16384))
        for i in (10, 11): a.E(self.hload(i))
        for j in range(8): a("v_mul_f32 v%d, s93, v%d" % (100 + j, 100 + j))
        for j in range(4): a("v_cvt_pk_bf16_f32 v%d, v%d, v%d" % (96 + j, 100 + 2 * j, 101 + 2 * j))
        for j in range(4):
            a("v_lshlrev_b32 v%d, 16, v%d" % (100 + 2 * j, 96 + j))
            a("v_and_b32 v%d, 0xffff0000, v%d" % (101 + 2 * j, 96 + j))
        a.barrier()
        for i in (12, 13): a.E(self.hload(i))
        for j in range(8):
            a("v_add_f32 v%d, v%d, v%d" % (64 + j, 64 + j, 72 + j))
            a("v_add_f32 v%d, v%d, v%d" % (80 + j, 80 + j, 88 + j))
        for j in range(8): a("v_add_f32 v%d, v%d, v%d" % (64 + j, 64 + j, 80 + j))
        for j in range(4): a("v_cvt_pk_bf16_f32 v%d, v%d, v%d" % (96 + j, 64 + 2 * j, 65 + 2 * j))
        for j in range(4):
            a("v_lshlrev_b32 v%d, 16, v%d" % (64 + 2 * j, 96 + j))
            a("v_and_b32 v%d, 0xffff0000, v%d" % (65 + 2 * j, 96 + j))
        for j in range(8): a("v_add_f32 v%d, v%d, v%d" % (64 + j, 64 + j, 100 + j))
        for j in range(4): a("v_cvt_pk_bf16_f32 v%d, v%d, v%d" % (4 + j, 64 + 2 * j, 65 + 2 * j))
        a("s_lshl_b32 s98, s50, 13\ns_add_u32 s98, s98, s55\ns_add_u32 s98, s98, %d" % PT)
        a("buffer_store_dwordx4 v[4:7], v2, s[56:59], s98 offen sc1", tag="PT")
        self.mark(10)(a)
        pos = {k: [] for k in range(56)}
        for i in range(14, 26): pos[i - 14] += self.hload(i)
        pos[19] += self.hload(26); pos[21] += self.hload(27)
        pos[22] += ["v_and_b32 v1, 31, v0", "v_lshlrev_b32 v1, 10, v1", "v_lshrrev_b32 v3, 5, v0", "v_lshl_add_u32 v1, v3, 4, v1",
                    "s_lshl_b32 s66, s51, 1\ns_add_u32 s66, s66, s67\ns_lshl_b32 s66, s66, 15\ns_lshl_b32 s3, s52, 7\ns_add_u32 s66, s66, s3\ns_lshl_b32 s3, s90, 5\ns_add_u32 s66, s66, s3"]
        pos[23] += ["buffer_load_dwordx4 v[16:19], v1, s[4:7], s66 offen"]
        pos[28] += ["s_lshl_b32 s3, s90, 9\ns_lshl_b32 s98, s50, 1\ns_add_u32 s3, s3, s98\ns_add_u32 s3, s3, s67\ns_lshl_b32 s3, s3, 2\ns_add_u32 s3, s3, %d\nv_mov_b32 v4, s100\nv_mov_b32 v5, 0" % FP,
                    lambda a: a.wait_tag("PT")] + self.lane0(["buffer_store_dword v4, v5, s[56:59], s3 offen sc1"])
        pos[28] += ["v_add_u32 v6, s54, v2", "v_add_u32 v7, 0x10000, v6"]
        wr = []
        for d in range(4):
            for q in range(2):
                r = 32 + 8 * d + 4 * q
                wr.append("ds_write_b128 v6, v[%d:%d] offset:%d" % (r, r + 3, d * 16384 + q * 1024))
        spread(pos, wr, 30, 46)
        ldP = "buffer_load_dword v20, v21, s[56:59], s99 offen sc1"
        pos[44] += ["v_and_b32 v21, 15, v0", "v_lshlrev_b32 v21, 2, v21",
                    "s_lshr_b32 s99, s51, 3\ns_lshl_b32 s99, s99, 11\ns_lshl_b32 s3, s52, 8\ns_add_u32 s99, s99, s3\ns_lshl_b32 s3, s90, 6\ns_add_u32 s99, s99, s3\ns_add_u32 s99, s99, %d" % FP, ldP]
        pos[46] += ["v_lshrrev_b32 v22, 2, v0", "v_lshlrev_b32 v22, 12, v22", "v_and_b32 v23, 3, v0", "v_lshl_or_b32 v22, v23, 4, v22",
                    "s_lshl_b32 s98, s52, 2\ns_add_u32 s98, s98, s90\ns_lshl_b32 s98, s98, 16\ns_lshl_b32 s3, s51, 1\ns_add_u32 s3, s3, s67\ns_lshl_b32 s3, s3, 6\ns_add_u32 s98, s98, s3\ns_add_u32 s98, s98, %d" % PT]
        pos[48] += ["v_lshlrev_b32 v23, 3, v23", "v_lshl_or_b32 v23, v3, 9, v23", "v_and_b32 v24, 12, v0", "v_lshl_or_b32 v23, v24, 4, v23",
                    "v_and_b32 v24, 16, v0", "v_lshl_or_b32 v23, v24, 1, v23", "s_add_u32 s3, s55, %d\nv_add_u32 v23, s3, v23" % PTB,
                    "s_lshl_b32 s3, s101, 14\nv_add_u32 v24, s3, v2"]
        AC1 = [112, 176]
        for mh in range(2):
            for k in range(14):
                for t in range(2):
                    c = 32 + 16 * t if mh == 0 else AC1[t]
                    if mh == 1 and k == 13 and t == 0:
                        a.wait_regs(self.hslot(27), self.hslot(27))
                        self.mark(11)(a)
                        self.check(ldP, [20])(a)
                        a("s_add_u32 m0, s55, %d" % PTB)
                        a("buffer_load_dwordx4 v22, s[56:59], s98 offen sc1 lds", tag="PD")
                    a(mf32(c, self.wd_reg(k) + 4 * t, self.hslot(14 * mh + k), k == 0))
                    a.E(pos[28 * mh + 2 * k + t])
        for d in range(4):
            for q in range(2):
                r = AC1[d >> 1] + 8 * (d & 1) + 4 * q
                a("ds_write_b128 v7, v[%d:%d] offset:%d" % (r, r + 3, d * 16384 + q * 1024))
        srd(a, 8, S_OUT, 2 << 20)
        a.barrier()
        self.mark(12)(a)
        for s in range(8):
            for q in range(2):
                r = 32 + 8 * s + 4 * q
                a("ds_read_b128 v[%d:%d], v24 offset:%d" % (r, r + 3, s * 2048 + q * 1024))
        for j in range(4):
            a("v_lshlrev_b32 v%d, 16, v%d" % (100 + 2 * j, 16 + j))
            a("v_and_b32 v%d, 0xffff0000, v%d" % (101 + 2 * j, 16 + j))
        for s in range(0, 8, 2):
            for j in range(8): a("v_add_f32 v%d, v%d, v%d" % (32 + 8 * s + j, 32 + 8 * s + j, 40 + 8 * s + j))
            if s == 2:
                for j in range(8): a("v_add_f32 v%d, v%d, v%d" % (32 + j, 32 + j, 48 + j))
        a.wait_tag("PD")
        a("ds_read_b64_tr_b16 v[96:97], v23")
        a("ds_read_b64_tr_b16 v[98:99], v23 offset:256")
        for j in range(8): a("v_add_f32 v%d, v%d, v%d" % (64 + j, 64 + j, 80 + j))
        for j in range(8): a("v_add_f32 v%d, v%d, v%d" % (32 + j, 32 + j, 64 + j))
        for j in range(4): a("v_cvt_pk_bf16_f32 v%d, v%d, v%d" % (40 + j, 32 + 2 * j, 33 + 2 * j))
        for j in range(4):
            a("v_lshlrev_b32 v%d, 16, v%d" % (48 + 2 * j, 96 + j))
            a("v_and_b32 v%d, 0xffff0000, v%d" % (49 + 2 * j, 96 + j))
        for j in range(8): a("v_add_f32 v%d, v%d, v%d" % (100 + j, 100 + j, 48 + j))
        for j in range(4): a("v_cvt_pk_bf16_f32 v%d, v%d, v%d" % (44 + j, 100 + 2 * j, 101 + 2 * j))
        for j in range(8):
            a("v_lshlrev_b32 v%d, 16, v%d" % (48 + 2 * j, 40 + j))
            a("v_and_b32 v%d, 0xffff0000, v%d" % (49 + 2 * j, 40 + j))
        for j in range(8): a("v_add_f32 v%d, v%d, v%d" % (48 + j, 48 + j, 56 + j))
        for j in range(4): a("v_cvt_pk_bf16_f32 v%d, v%d, v%d" % (40 + j, 48 + 2 * j, 49 + 2 * j))
        a("buffer_store_dwordx4 v[40:43], v1, s[8:11], s66 offen")
        self.mark(13)(a)
        self.st.dump(a, 30)
        a.label(self.label + "_end")
        a("s_endpgm")
        a.label(self.label + "_fin")

    def build(self):
        global PK
        a = self.a
        inter = 'kgi' in self.opt
        PK = not inter
        self.prologue()
        self.ln()
        a.E(self.kg_pre())
        self.mark(3)(a)
        a("s_cmp_ge_u32 s101, 4")
        a("s_cbranch_scc1 Lp1")
        a.save("p")
        for p in range(2):
            if p == 1:
                a.label("Lp1"); a.restore("p")
            if not inter:
                a.barrier()
                a.E(self.kg_chain(p) + self.kg_addr()); a.barrier()
                a.E(self.kg_mfma()); a.barrier()
                a.E(self.kg_tw() + self.kg_xaddr()); a.barrier()
                a.E(self.kg_expand())
            self.gemm1(p)
            if p == 0:
                a("s_branch Lpj"); a.save("pj")
        a.label("Lpj"); a.merge("pj")
        self.rest()
        hdr = HDR + "; @launch grid=(256,1,1) block=(512,1,1) lds=%d\n" % LDS
        hdr += '.amdgcn_target "amdgcn-amd-amdhsa--gfx950"\n.text\n'
        return hdr + a.text() + '.section .rodata,"a"\n.p2align 6\n' + desc(self.label, 256, 256)

if __name__ == "__main__":
    g = Gen(stamps="--stamps" in sys.argv, opt=[x[2:] for x in sys.argv[2:]])
    open(sys.argv[1], "w").write(g.build())
    print(g.a.cnt, "nops", g.a.nops)
```
